```python
import torch

def _softmax(x, axis=-1):
    return torch.softmax(x, dim=axis)

def _gelu(x):
    return torch.nn.functional.gelu(x, approximate='tanh')

def _silu(x):
    return torch.nn.functional.silu(x)

def _sigmoid(x):
    return torch.sigmoid(x)

def _layernorm(x, axis=-1, eps=1e-05):
    m = x.mean(dim=axis, keepdim=True)
    v = x.var(dim=axis, keepdim=True, unbiased=False)
    return (x - m) / torch.sqrt(v + eps)

def _scatter_add(tgt, idx, src, axis=0):
    return tgt.clone().index_add_(axis, idx, src)

def _segment_sum(src, seg, n):
    out = torch.zeros((n,) + src.shape[1:], dtype=src.dtype)
    return out.index_add_(0, seg, src)

def _pad(x, pw):
    flat = tuple((v for pair in reversed(pw) for v in pair))
    return torch.nn.functional.pad(x, flat)
kernel_name = 'adaLN_cond__spectral_fnet__mixer_gmlp__prompt'

def setup_inputs():

    _w = lambda a: (lambda t: t.to(torch.bfloat16) if t.is_floating_point() else t)(torch.as_tensor(a))

    def _A_setup():
        B, S, D = (1, 2048, 640)
        ns = torch.arange(S)[:, None] * torch.arange(S)[None, :]
        nd = torch.arange(D)[:, None] * torch.arange(D)[None, :]
        Ws_re = torch.cos(-2.0 * torch.pi * ns / S).to(float)
        Ws_im = torch.sin(-2.0 * torch.pi * ns / S).to(float)
        Wd_re = torch.cos(-2.0 * torch.pi * nd / D).to(float)
        Wd_im = torch.sin(-2.0 * torch.pi * nd / D).to(float)
        return {'x': _w((lambda *s: torch.randn(*s, dtype=torch.bfloat16) * 0.1)(B, S, D)), 'dft_seq_re': _w(Ws_re), 'dft_seq_im': _w(Ws_im), 'dft_hid_re': _w(Wd_re), 'dft_hid_im': _w(Wd_im)}
    _A_in = _A_setup()

    def _B_setup():
        B, S, D, F = (1, 2048, 640, 1728)
        Fh = F // 2
        return {'x': _w((lambda *s: torch.randn(*s, dtype=torch.bfloat16) * 0.1)(B, S, D)), 'w_in': _w((lambda *s: torch.randn(*s, dtype=torch.bfloat16) * 3.2)(D, 2 * Fh)), 'w_sp': _w(0.01 * (lambda *s: torch.randn(*s, dtype=torch.bfloat16) * 3.2)(S, S)), 'b_sp': _w(1.0 + 0.01 * (lambda *s: torch.randn(*s, dtype=torch.bfloat16) * 1.6)(S)), 'w_out': _w((lambda *s: torch.randn(*s, dtype=torch.bfloat16) * 1.6)(Fh, D))}
    _B_in = _B_setup()
    return {'A_x': _A_in['x'], 'A_dft_seq_re': _A_in['dft_seq_re'], 'A_dft_seq_im': _A_in['dft_seq_im'], 'A_dft_hid_re': _A_in['dft_hid_re'], 'A_dft_hid_im': _A_in['dft_hid_im'], 'B_x': _B_in['x'], 'B_w_in': _B_in['w_in'], 'B_w_sp': _B_in['w_sp'], 'B_b_sp': _B_in['b_sp'], 'B_w_out': _B_in['w_out'], 'c': _w((lambda *s: torch.randn(*s, dtype=torch.bfloat16) * 0.2)(1, 640) * 8.0), 'w_mod': _w((lambda *s: torch.randn(*s, dtype=torch.bfloat16) * 0.2)(640, 6 * 640) * 640 ** (-0.5) * 8.0)}

def reference(A_x, A_dft_seq_re, A_dft_seq_im, A_dft_hid_re, A_dft_hid_im, B_x, B_w_in, B_w_sp, B_b_sp, B_w_out, c, w_mod):

    def _A_ref(x, dft_seq_re, dft_seq_im, dft_hid_re, dft_hid_im):
        a = torch.einsum('bsd,ed->bse', x, dft_hid_re)
        b = torch.einsum('bsd,ed->bse', x, dft_hid_im)
        y = torch.einsum('ts,bse->bte', dft_seq_re, a) - torch.einsum('ts,bse->bte', dft_seq_im, b)
        return y

    def _B_ref(x, w_in, w_sp, b_sp, w_out):
        B, S, D = x.shape
        F = w_in.shape[-1]
        Fh = F // 2
        z = _gelu(torch.einsum('bsd,df->bsf', x, w_in))
        z1 = z[..., :Fh].clone()
        z2 = _layernorm(z[..., Fh:], axis=-1)
        g = torch.einsum('ts,bsf->btf', w_sp, z2) + b_sp[None, :, None]
        return torch.einsum('bsf,fd->bsd', z1 * g, w_out)
    x = A_x
    mod = (_silu(c) @ w_mod).reshape(c.shape[0], 6, 1, -1)
    sa, ca, ga, sb, cb, gb = (mod[:, 0].clone(), mod[:, 1].clone(), mod[:, 2].clone(), mod[:, 3].clone(), mod[:, 4].clone(), mod[:, 5].clone())
    h = _layernorm(x, axis=-1) * (1 + ca) + sa
    x = x + ga * _A_ref(h, A_dft_seq_re, A_dft_seq_im, A_dft_hid_re, A_dft_hid_im)
    h = _layernorm(x, axis=-1) * (1 + cb) + sb
    x = x + gb * _B_ref(h, B_w_in, B_w_sp, B_b_sp, B_w_out)
    return x
```

```python
import re
import struct

REG_RE = re.compile(r'^(-|abs\()?([vas])(?:(\d+)|\[(\d+):(\d+)\])\)?$')
TRANS = ('v_exp_f32', 'v_log_f32', 'v_rcp_f32', 'v_rsq_f32', 'v_sqrt_f32', 'v_sin_f32', 'v_cos_f32')
NO_DST_S = ('s_cmp', 's_cbranch', 's_branch', 's_waitcnt', 's_barrier', 's_nop', 's_bitcmp', 's_setprio',
            's_sleep', 's_endpgm', 's_setpc')


def f2u(x):
    return struct.unpack('<I', struct.pack('<f', x))[0]


def fl(x):
    return '0x%08x' % f2u(x)


def v(i, n=1):
    return f'v{i}' if n == 1 else f'v[{i}:{i + n - 1}]'


def a(i, n=1):
    return f'a{i}' if n == 1 else f'a[{i}:{i + n - 1}]'


def s(i, n=1):
    return f's{i}' if n == 1 else f's[{i}:{i + n - 1}]'


def regs_of(op):
    op = op.strip()
    if op == 'vcc':
        return {'vcc'}
    if op == 'exec':
        return {'exec'}
    if op == 'm0':
        return {'m0'}
    m = REG_RE.match(op)
    if not m:
        return set()
    k = m.group(2)
    if m.group(3) is not None:
        return {k + m.group(3)}
    return {k + str(i) for i in range(int(m.group(4)), int(m.group(5)) + 1)}


class Ins:
    def __init__(self, text, tok_w=(), tok_r=()):
        self.text = text.strip()
        self.label = None
        body = self.text.split(';')[0].strip()
        parts = body.split(None, 1)
        self.mn = parts[0]
        rest = parts[1] if len(parts) > 1 else ''
        fields = [x.strip() for x in re.split(r',(?![^\[]*\])', rest)] if rest else []
        ops, mods = [], []
        for i, f in enumerate(fields):
            if i == len(fields) - 1:
                w = re.split(r'\s+(?![^\[]*\])', f)
                ops.append(w[0])
                mods = w[1:]
            else:
                ops.append(f)
        self.ops, self.mods = ops, mods
        self.tok_w, self.tok_r = set(tok_w), set(tok_r)
        self.classify()

    def classify(self):
        mn, ops = self.mn, self.ops
        R = [regs_of(o) for o in ops]
        allr = set().union(*R) if R else set()
        self.kind = 'other'
        self.w, self.r = set(), set()
        self.cnt = None
        self.srcc = set()
        self.ab = set()
        self.wide_store = set()
        self.dpp = any(m.startswith(('row_', 'quad_perm', 'wave_')) for m in self.mods) or mn.endswith('_dpp')
        if mn.startswith('v_mfma'):
            self.kind = 'mfma'
            self.w = R[0]
            self.ab = R[1] | R[2]
            self.srcc = R[3]
            self.r = self.ab | self.srcc
            self.passes = 8 if '32x32x16' in mn else 4
        elif mn.startswith(('buffer_', 'global_')):
            self.kind = 'vmem'
            self.cnt = 'vm'
            is_lds = 'lds' in self.mods or mn.startswith('global_load_lds')
            if 'load' in mn and not is_lds:
                self.w = R[0]
                self.r = set().union(*R[1:])
            else:
                self.r = allr
                if is_lds:
                    self.r = self.r | {'m0'}
                    self.lds_dma = True
                if 'store' in mn and ('x4' in mn or 'x3' in mn):
                    self.wide_store = R[0] if mn.startswith('buffer_') else R[1]
                if 'atomic' in mn and 'sc0' in self.mods:
                    self.w = R[0]
        elif mn.startswith('ds_'):
            self.kind = 'ds'
            self.cnt = 'lgkm'
            if mn.startswith(('ds_read', 'ds_bpermute', 'ds_permute', 'ds_swizzle')):
                self.w = R[0]
                self.r = set().union(*R[1:])
            else:
                self.r = allr
        elif mn.startswith(('s_load', 's_memtime', 's_memrealtime')):
            self.kind = 'smem'
            self.cnt = 'lgkm'
            self.w = R[0]
            self.r = set().union(*R[1:]) if len(R) > 1 else set()
        elif mn.startswith('v_'):
            self.kind = 'valu'
            if mn.startswith(('v_permlane16_swap', 'v_permlane32_swap', 'v_swap')):
                self.w = allr
                self.r = allr
            elif mn.startswith(('v_add_co', 'v_addc_co', 'v_sub_co', 'v_subb_co')):
                self.w = R[0] | R[1]
                self.r = set().union(*R[2:])
            else:
                self.w = R[0]
                self.r = set().union(*R[1:]) if len(R) > 1 else set()
                if mn.startswith(('v_fmac', 'v_dot2c', 'v_writelane')) or self.dpp:
                    self.r = self.r | R[0]
        elif mn.startswith('s_'):
            self.kind = 'salu'
            if mn.startswith(NO_DST_S):
                self.r = allr
            else:
                self.w = R[0]
                self.r = set().union(*R[1:]) if len(R) > 1 else set()
                if 'saveexec' in mn:
                    self.w = self.w | {'exec'}
                if mn.startswith(('s_addk', 's_mulk', 's_cmov')):
                    self.r = self.r | R[0]
        elif mn == 'pseudo':
            self.kind = 'pseudo'
        else:
            raise ValueError('unknown instruction ' + self.text)
        self.trans = mn.replace('_e64', '').replace('_e32', '') in TRANS
        self.dot = mn.startswith('v_dot')

    def states(self):
        if self.kind == 'pseudo':
            return 0
        if self.mn == 's_nop':
            return int(self.ops[0], 0) + 1
        return 1


class Label:
    def __init__(self, name):
        self.label = name
        self.kind = 'label'
        self.mn = ''
        self.text = name + ':'
        self.w = self.r = set()
        self.tok_w = self.tok_r = set()
        self.cnt = None

    def states(self):
        return 0


def parse_wait(ins):
    t = ins.text
    m = re.search(r'vmcnt\((\d+)\)', t)
    n = re.search(r'lgkmcnt\((\d+)\)', t)
    return (int(m.group(1)) if m else None, int(n.group(1)) if n else None)


class Prog:
    def __init__(self, name):
        self.name = name
        self.items = []
        self.nlab = 0

    def __call__(self, text, tw=(), tr=()):
        for line in text.split('\n'):
            line = line.strip()
            if not line or line.startswith(';'):
                continue
            self.items.append(Ins(line, tw, tr))

    def label(self, name):
        self.items.append(Label(name))

    def newlabel(self, base='L'):
        self.nlab += 1
        return f'{self.name}_{base}{self.nlab}'

    def need(self, *toks):
        self.items.append(Ins('pseudo', (), toks))

    def _cfg(self):
        it = self.items
        pos = {x.label: i for i, x in enumerate(it) if x.kind == 'label'}
        succ = [[] for _ in it]
        for i, x in enumerate(it):
            if x.mn == 's_endpgm':
                continue
            if x.mn == 's_branch':
                succ[i].append(pos[x.ops[0]])
                continue
            if x.mn.startswith('s_cbranch'):
                succ[i].append(pos[x.ops[0]])
            if i + 1 < len(it):
                succ[i].append(i + 1)
        pred = [[] for _ in it]
        for i, ss in enumerate(succ):
            for j in ss:
                pred[j].append(i)
        return succ, pred

    def place_waits(self):
        it = self.items
        succ, pred = self._cfg()
        want = {}

        def merge(x, y):
            if x is None:
                return y
            out = []
            for k in range(2):
                d = dict(x[k])
                for r, age in y[k].items():
                    d[r] = min(age, d.get(r, 1 << 30))
                out.append(d)
            return (out[0], out[1], x[2] or y[2], max(x[3], y[3]))

        def apply_wait(st, vm, lg):
            d0, d1, sm, nout = st
            if vm is not None:
                d0 = {r: g for r, g in d0.items() if g < vm}
                nout = min(nout, vm)
            if lg is not None:
                if lg == 0:
                    d1, sm = {}, False
                elif not sm:
                    d1 = {r: g for r, g in d1.items() if g < lg}
            return (d0, d1, sm, nout)

        def step(i, st):
            x = it[i]
            changed = False
            if x.kind == 'label':
                return st, False
            if x.mn == 's_waitcnt':
                return apply_wait(st, *parse_wait(x)), False
            touch = x.r | x.w | x.tok_r
            if i in want:
                st = apply_wait(st, *want[i])
            vm = [g for r, g in st[0].items() if r in touch]
            lg = [g for r, g in st[1].items() if r in touch]
            if x.cnt == 'vm' and x.w:
                pass
            nv = min(min(vm), 63) if vm else None
            nl = (0 if st[2] else min(min(lg), 15)) if lg else None
            if nv is not None or nl is not None:
                o = want.get(i, (None, None))
                nv2 = nv if o[0] is None else (o[0] if nv is None else min(nv, o[0]))
                nl2 = nl if o[1] is None else (o[1] if nl is None else min(nl, o[1]))
                want[i] = (nv2, nl2)
                changed = True
                st = apply_wait(st, nv2, nl2)
            d0, d1, sm, nout = st
            if x.cnt == 'vm':
                d0 = {r: g + 1 for r, g in d0.items()}
                for r in x.w | x.tok_w:
                    d0[r] = 0
                nout += 1
                assert nout <= 63, f'{self.name}: more than 63 VMEM ops may be outstanding at {x.text}'
            elif x.cnt == 'lgkm':
                d1 = {r: g + 1 for r, g in d1.items()}
                for r in x.w | x.tok_w:
                    d1[r] = 0
                if x.kind == 'smem':
                    sm = True
            return (d0, d1, sm, nout), changed

        for _ in range(50):
            sin = [None] * len(it)
            sin[0] = ({}, {}, False, 0)
            work = [0]
            any_change = False
            while work:
                work.sort()
                i = work.pop(0)
                out, ch = step(i, sin[i])
                any_change |= ch
                for j in succ[i]:
                    m = merge(sin[j], out)
                    if m != sin[j]:
                        sin[j] = m
                        if j not in work:
                            work.append(j)
            if not any_change:
                break
        else:
            raise RuntimeError('wait placement did not converge')
        new = []
        for i, x in enumerate(it):
            if i in want:
                nv, nl = want[i]
                t = 's_waitcnt' + (f' vmcnt({nv})' if nv is not None else '') + (f' lgkmcnt({nl})' if nl is not None else '')
                new.append(Ins(t))
            if x.kind != 'pseudo':
                new.append(x)
        self.items = new

    @staticmethod
    def required(p, c):
        need = 0
        isv = lambda rs: {r for r in rs if r[0] in 'va' and r != 'vcc'}
        iss = lambda rs: {r for r in rs if r[0] == 's' or r == 'vcc'}
        if p.kind == 'valu':
            pv, ps = isv(p.w), iss(p.w)
            if c.kind == 'mfma' and pv & c.r:
                need = max(need, 2)
            if c.kind == 'vmem' and ps & c.r:
                need = max(need, 5)
            if c.kind == 'valu':
                if ps & c.r:
                    need = max(need, 4 if c.mn.startswith(('v_readlane', 'v_writelane')) else 2)
                if c.dpp and pv & c.r:
                    need = max(need, 2)
                if c.mn.startswith(('v_readlane', 'v_readfirstlane')) and pv & c.r:
                    need = max(need, 1)
                if c.mn.startswith('v_permlane') and pv & c.r:
                    need = max(need, 2)
                if p.trans and not c.trans and pv & c.r:
                    need = max(need, 1)
            if p.dot and c.kind in ('valu', 'mfma', 'vmem', 'ds') and pv & (c.r | c.w):
                same_c = c.mn == p.mn and not (pv & set().union(*[regs_of(o) for o in c.ops[1:3]]))
                if not same_c:
                    need = max(need, 3)
            if c.kind == 'salu' and ps & c.r:
                need = max(need, 1)
        if p.kind == 'mfma':
            big = p.passes == 8
            if c.kind == 'mfma':
                if p.w & c.ab:
                    need = max(need, 12 if big else 8)
                if p.w & c.srcc and not (c.srcc == p.w and c.mn == p.mn):
                    need = max(need, 10 if big else 6)
                if p.w & c.w and not (p.w & c.srcc):
                    need = max(need, 12 if big else 8)
            elif c.kind in ('valu', 'vmem', 'ds') and p.w & (c.r | c.w):
                need = max(need, 12 if big else 8)
            if c.kind == 'valu' and p.srcc & c.w:
                need = max(need, 7 if big else 3)
        if p.kind == 'vmem' and p.wide_store & c.w and c.kind in ('valu', 'mfma', 'vmem', 'ds'):
            need = max(need, 2)
        if p.kind == 'salu' and 'm0' in p.w and 'm0' in c.r and c.kind in ('vmem', 'ds'):
            need = max(need, 1)
        return need

    def pad_hazards(self):
        MAXD = 13
        while True:
            it = self.items
            _, pred = self._cfg()
            fix = None
            for i, c in enumerate(it):
                if c.kind == 'label' or c.mn in ('s_nop', 's_waitcnt', 's_barrier'):
                    continue
                short = 0
                stack = [(p, 0) for p in pred[i]]
                seen = {}
                while stack:
                    j, d = stack.pop()
                    if d >= MAXD or seen.get(j, 99) <= d:
                        continue
                    seen[j] = d
                    p = it[j]
                    if p.kind != 'label':
                        short = max(short, self.required(p, c) - d)
                    for q in pred[j]:
                        stack.append((q, d + p.states()))
                if short > 0:
                    if fix is None:
                        fix = []
                    fix.append((i, short))
                    break_at = i
                    break
            if fix is None:
                return
            i, n = fix[0]
            self.items.insert(i, Ins(f's_nop {n - 1}'))

    def pad_hazards_fast(self):
        MAXD = 13
        start = 0
        for _ in range(3):
            i = 0
            changed = False
            _, pred = self._cfg()
            while i < len(self.items):
                it = self.items
                c = it[i]
                if c.kind == 'label' or c.mn in ('s_nop', 's_waitcnt', 's_barrier'):
                    i += 1
                    continue
                short = 0
                stack = [(p, 0) for p in pred[i]]
                seen = {}
                while stack:
                    j, d = stack.pop()
                    if d >= MAXD or seen.get(j, 99) <= d:
                        continue
                    seen[j] = d
                    p = it[j]
                    if p.kind != 'label':
                        short = max(short, self.required(p, c) - d)
                    for q in pred[j]:
                        stack.append((q, d + p.states()))
                if short > 0:
                    self.items.insert(i, Ins(f's_nop {short - 1}'))
                    changed = True
                    _, pred = self._cfg()
                    i += 1
                i += 1
            if not changed:
                return

    def maxregs(self):
        mv = ma = ms = -1
        for x in self.items:
            for r in x.r | x.w:
                if r[0] == 'v' and r != 'vcc':
                    mv = max(mv, int(r[1:]))
                elif r[0] == 'a':
                    ma = max(ma, int(r[1:]))
                elif r[0] == 's':
                    ms = max(ms, int(r[1:]))
        return mv + 1, ma + 1, ms + 1

    def finish(self):
        self.place_waits()
        self.pad_hazards_fast()

    def text(self):
        out = [f'.p2align 8', f'.type {self.name},@function', f'{self.name}:']
        for x in self.items:
            out.append(x.text if x.kind == 'label' else '  ' + x.text)
        return '\n'.join(out) + '\n'

    def descriptor(self):
        nv, na, ns = self.maxregs()
        acc = max(4, (nv + 3) // 4 * 4)
        nfv = acc + na if na else nv
        return (f'.p2align 6\n.amdhsa_kernel {self.name}\n'
                f'  .amdhsa_next_free_vgpr {nfv}\n  .amdhsa_next_free_sgpr {max(ns, 16)}\n'
                f'  .amdhsa_accum_offset {acc}\n  .amdhsa_group_segment_fixed_size 0\n'
                f'  .amdhsa_kernarg_size 120\n  .amdhsa_user_sgpr_count 2\n'
                f'  .amdhsa_user_sgpr_kernarg_segment_ptr 1\n  .amdhsa_system_sgpr_workgroup_id_x 1\n'
                f'  .amdhsa_float_denorm_mode_32 3\n'
                f'.end_amdhsa_kernel\n')


class Alloc:
    def __init__(self, start=0, limit=256):
        self.n = start
        self.limit = limit

    def get(self, n=1, align=None):
        al = align or (1 if n == 1 else 2 if n == 2 else 4 if n >= 4 else 2)
        self.n = (self.n + al - 1) // al * al
        r = self.n
        self.n += n
        assert self.n <= self.limit, 'out of registers'
        return r
```

```python
import math
import struct

S, D, FH = 2048, 640, 864
T_ROW = 1312
T_BLK = 64 * T_ROW


def al(x, a=4096):
    return (x + a - 1) // a * a


T_OFF = 0
MOD_OFF = al(T_OFF + 32 * T_BLK)
STAT_OFF = al(MOD_OFF + 15360)
WIN_OFF = al(STAT_OFF + 16384)
WOUT_OFF = al(WIN_OFF + 16 * 143360)
H2_OFF = al(WOUT_OFF + 8 * 28 * 5 * 1024)
X1_OFF = al(H2_OFF + 128 * 20 * 1024)
Z1_OFF = al(X1_OFF + 2048 * 1280)
Z2_OFF = al(Z1_OFF + 128 * 112 * 256)
U_OFF = al(Z2_OFF + 8 * 64 * 7 * 1024)
WS_END = al(U_OFF + 128 * 112 * 256)

KA_X, KA_WIN, KA_WSP, KA_BSP, KA_WOUT, KA_C, KA_WMOD, KA_OUT, KA_DBG, KA_WS = 0, 48, 56, 64, 72, 80, 88, 96, 104, 112


def bf16_bits(x):
    u = struct.unpack('<I', struct.pack('<f', x))[0]
    return ((u + 0x7FFF + ((u >> 16) & 1)) >> 16) & 0xFFFF


def cosr(num, den):
    num %= den
    if 4 * num == den or 4 * num == 3 * den:
        return 0.0
    return math.cos(2 * math.pi * num / den)


def frag(fn):
    out = []
    for l in range(64):
        vals = [bf16_bits(fn(l & 15, l >> 4, q)) for q in range(8)]
        out += [vals[2 * k] | (vals[2 * k + 1] << 16) for k in range(4)]
    return out


def f32w(x):
    return struct.unpack('<I', struct.pack('<f', x))[0]


def tables():
    t = []
    for mb in range(3):
        for cp in range(2):
            def fn(m, g, q):
                e2, cpp = 8 * mb + (m >> 1), m & 1
                d2 = 16 * (q >> 2) + 4 * g + (q & 3)
                if e2 >= 20 or d2 >= 20:
                    return 0.0
                return cosr(e2 * d2 + 5 * (cpp - cp), 20)
            t += frag(fn)
    for nb in range(2):
        for ks in range(2):
            def fn(n, g, q):
                e1 = 16 * nb + n
                d1 = 16 * ks + 4 * g + (q >> 1)
                return cosr(e1 * d1 - 8 * (q & 1), 32)
            t += frag(fn)
    for mb in range(3):
        for nb in range(2):
            for l in range(64):
                d1 = 16 * nb + (l & 15)
                for p in range(2):
                    e2 = 8 * mb + 2 * (l >> 4) + p
                    t += [f32w(cosr(e2 * d1, 640)), f32w(cosr(e2 * d1 - 160, 640))]
    for nb in range(4):
        for ks in range(2):
            def fn(n, g, q):
                o = 16 * nb + n
                t2, c = o & 31, o >> 5
                if o == 32:
                    t2, c = 32, 0
                s2 = 32 * ks + 16 * (q >> 2) + 4 * g + (q & 3)
                return cosr(t2 * s2 + 16 * c, 64)
            t += frag(fn)
    return t


CT_CA, CT_CB, CT_TW, CT_FA, CT_SIZE = 0, 6144, 10240, 16384, 24576


def colperm(b, n):
    return 32 * (b >> 1) + 8 * (n >> 2) + 4 * (b & 1) + (n & 3) if b < 6 else 96 + n
```

```python
import sys
from asmlib import *
from layout import *

OOB = 0x80000000
NAME = 'adaLN_cond__spectral_fnet__mixer_gmlp__prompt'
HEADER = open('cdna_kernels/' + NAME + '.s.ref').read().split('; Override launch')[0]
LOG2E = 1.4426950408889634


def srd(P, R, kaoff, size):
    P(f's_load_dwordx2 {s(R, 2)}, s[0:1], {kaoff}')
    P(f's_mov_b32 {s(R + 2)}, {size}')
    P(f's_mov_b32 {s(R + 3)}, 0x20000')


def pcsrd(P, R, sym, size):
    lab = P.newlabel('pc')
    P(f's_getpc_b64 {s(R, 2)}')
    P.label(lab)
    P(f's_add_u32 {s(R)}, {s(R)}, {sym}-{lab}')
    P(f's_addc_u32 {s(R + 1)}, {s(R + 1)}, 0')
    P(f's_mov_b32 {s(R + 2)}, {size}')
    P(f's_mov_b32 {s(R + 3)}, 0x20000')


def code_prefetch(P, R, vtmp, vdst, first, last, nthreads, nloads, guard=True):
    skip = P.newlabel('nopf')
    if guard:
        P('s_cmp_ge_u32 s2, 8')
        P(f's_cbranch_scc1 {skip}')
    pcsrd(P, R, first, f'{last}-{first}')
    P(f'v_lshlrev_b32 {v(vtmp)}, 6, v0')
    for i in range(nloads):
        if i:
            P(f'v_add_u32 {v(vtmp)}, {nthreads * 64}, {v(vtmp)}')
        P(f'buffer_load_dword {v(vdst + i)}, {v(vtmp)}, {s(R, 4)}, 0 offen')
    P.label(skip)


def mfma(P, d, x, y, c):
    P(f'v_mfma_f32_16x16x32_bf16 {d}, {x}, {y}, {c}')


def unpack(P, lo, hi, src):
    P(f'v_lshlrev_b32 {v(lo)}, 16, {v(src)}')
    P(f'v_and_b32 {v(hi)}, 0xffff0000, {v(src)}')


def dpp_add(P, d, x, y, ctl, row=0xf, bank=0xf):
    P(f'v_add_f32_dpp {v(d)}, {v(x)}, {v(y)} {ctl} row_mask:{row:#x} bank_mask:{bank:#x}')


def ln_finish(P, pairs, n, tmps):
    for (sm, sq), t in zip(pairs, tmps):
        P(f'v_mul_f32 {v(sm)}, {fl(-1.0 / n)}, {v(sm)}')
        P(f'v_mul_f32 {v(sq)}, {fl(1.0 / n)}, {v(sq)}')
    for (sm, sq), t in zip(pairs, tmps):
        P(f'v_fma_f32 {v(sq)}, -{v(sm)}, {v(sm)}, {v(sq)}')
    for (sm, sq), t in zip(pairs, tmps):
        P(f'v_max_f32 {v(sq)}, 0, {v(sq)}')
    for (sm, sq), t in zip(pairs, tmps):
        P(f'v_add_f32 {v(sq)}, {fl(1e-5)}, {v(sq)}')
    for (sm, sq), t in zip(pairs, tmps):
        P(f'v_rsq_f32 {v(sq)}, {v(sq)}')
    for (sm, sq), t in zip(pairs, tmps):
        P(f'v_mul_f32 {v(sm)}, {v(sm)}, {v(sq)}')


KA_GV, KA_FT, KA_WI, KA_WO, KA_END = 8, 72, 328, 408, 436
KA_LDS = 32 * 1296


def gen_ka():
    P = Prog('ka_kernel')
    WS, SRC, TB = 4, 8, 12
    T0, T1, T2, T3 = 18, 19, 20, 21
    srd(P, WS, KA_WS, WS_END)
    P(f's_cmp_lt_u32 s2, {KA_GV}')
    P('s_cbranch_scc1 ka_pf')
    P(f's_cmp_lt_u32 s2, {KA_FT}')
    P('s_cbranch_scc1 ka_gv')
    P(f's_cmp_ge_u32 s2, {KA_WI}')
    P('s_cbranch_scc1 ka_re')

    srd(P, SRC, KA_X, S * 1280)
    S1, CS = 16, 17
    P(f's_sub_u32 s{T0}, s2, {KA_FT}')
    P(f's_lshr_b32 s{T1}, s{T0}, 6')
    P(f's_and_b32 s{S1}, s{T0}, 7')
    P(f's_lshl3_add_u32 s{S1}, s{T1}, s{S1}')
    P(f's_bfe_u32 s{CS}, s{T0}, 0x30003')
    A = Alloc(1, 128)
    vj, vrow, vc, vt, vu = [A.get() for _ in range(5)]
    addr = [A.get() for _ in range(5)]
    X = [[A.get(4) for _ in range(5)] for _ in range(2)]
    FA = [A.get(4) for _ in range(2)]
    st = [A.get() for _ in range(4)]
    one = A.get()
    tmp = [A.get() for _ in range(4)]
    Dm = [A.get(4) for _ in range(5)]
    PK = A.get(12)
    P(f'v_and_b32 {v(vj)}, 15, v0')
    P(f'v_lshrrev_b32 {v(vrow)}, 4, v0')
    P(f's_mul_i32 s{T0}, s{S1}, 1280')
    P(f's_mul_i32 s{T2}, s{CS}, 160')
    P(f'v_lshl_add_u32 {v(vc)}, {v(vj)}, 4, s{T2}')
    P(f'v_mul_u32_u24 {v(vt)}, 40960, {v(vrow)}')
    P(f's_add_u32 s{T1}, s{T0}, {32 * 40960}')
    for i in range(5):
        r = addr[i]
        P(f'v_add_u32 {v(r)}, {(256 * i - 1280) & 0xffffffff:#x}, {v(vc)}')
        if i:
            P(f'v_add_u32 {v(vu)}, {256 * i}, {v(vc)}')
        P(f'v_min_u32 {v(r)}, {v(r)}, {v(vu if i else vc)}')
        P(f'v_add_u32 {v(r)}, {v(r)}, {v(vt)}')
        P(f'buffer_load_dwordx4 {v(X[0][i], 4)}, {v(r)}, {s(SRC, 4)}, s{T0} offen')
    for i in range(5):
        P(f'buffer_load_dwordx4 {v(X[1][i], 4)}, {v(addr[i])}, {s(SRC, 4)}, s{T1} offen')
    pcsrd(P, TB, f'ctab+{CT_FA}', 8192)
    P(f'v_and_b32 {v(vu)}, 63, v0')
    P(f'v_bfe_u32 {v(vt)}, v0, 6, 2')
    P(f'v_lshlrev_b32 {v(vu)}, 4, {v(vu)}')
    P(f'v_lshl_add_u32 {v(vu)}, {v(vt)}, 11, {v(vu)}')
    for ks in range(2):
        P(f'buffer_load_dwordx4 {v(FA[ks], 4)}, {v(vu)}, {s(TB, 4)}, 0 offen offset:{1024 * ks}')
    P(f'v_mov_b32 {v(one)}, 0x3f803f80')
    for r in st:
        P(f'v_mov_b32 {v(r)}, 0')
    vw, vr, vs = addr[0], addr[1], addr[2]
    P(f'v_mul_u32_u24 {v(vw)}, 160, {v(vrow)}')
    P(f'v_lshl_add_u32 {v(vw)}, {v(vj)}, 4, {v(vw)}')
    P(f'v_bfe_u32 {v(vr)}, v0, 2, 4')
    P(f'v_mul_u32_u24 {v(vr)}, 160, {v(vr)}')
    P(f'v_and_b32 {v(vt)}, 3, v0')
    P(f'v_mad_u32_u24 {v(vr)}, {v(vt)}, 40, {v(vr)}')
    P(f'v_bfe_u32 {v(vt)}, v0, 6, 1')
    P(f'v_lshl_add_u32 {v(vs)}, {v(vt)}, 4, {v(vj)}')
    P(f'v_mul_u32_u24 {v(vs)}, {T_BLK}, {v(vs)}')
    P(f'v_bfe_u32 {v(vt)}, v0, 7, 1')
    P(f'v_mul_u32_u24 {v(vt)}, {32 * T_ROW}, {v(vt)}')
    P(f'v_bfe_u32 {v(vu)}, v0, 4, 2')
    P(f'v_mad_u32_u24 {v(vt)}, {v(vu)}, 40, {v(vt)}')
    P(f'v_add_u32 {v(vs)}, {v(vs)}, {v(vt)}')
    P(f's_mul_i32 s{T0}, s{S1}, {T_ROW}')
    P(f's_add_u32 s{T0}, s{T0}, s{T2}')
    if T_OFF:
        P(f's_add_u32 s{T0}, s{T0}, {T_OFF}')
    for q in range(2):
        for i in range(5):
            for k in range(4):
                P(f'v_dot2c_f32_bf16 {v(st[2 * q])}, {v(X[q][i] + k)}, {v(one)}')
                P(f'v_dot2c_f32_bf16 {v(st[2 * q + 1])}, {v(X[q][i] + k)}, {v(X[q][i] + k)}')
    for ctl in ('row_ror:8', 'row_ror:4', 'row_ror:2', 'row_ror:1'):
        for r in st:
            dpp_add(P, r, r, r, ctl)
    ln_finish(P, [(st[0], st[1]), (st[2], st[3])], 640, tmp)
    for q in range(2):
        for k in range(4):
            x = X[q][0] + k
            lo, hi = tmp[2 * (k & 1)], tmp[2 * (k & 1) + 1]
            unpack(P, lo, hi, x)
            P(f'v_fma_f32 {v(lo)}, {v(lo)}, {v(st[2 * q + 1])}, {v(st[2 * q])}')
            P(f'v_fma_f32 {v(hi)}, {v(hi)}, {v(st[2 * q + 1])}, {v(st[2 * q])}')
            P(f'v_cvt_pk_bf16_f32 {v(x)}, {v(lo)}, {v(hi)}')
    P('s_mov_b32 exec_lo, 0x03ff03ff')
    P('s_mov_b32 exec_hi, 0x03ff03ff')
    for q in range(2):
        P(f'ds_write_b128 {v(vw)}, {v(X[q][0], 4)} offset:{5120 * q}', tw=['xn'])
    P('s_mov_b64 exec, -1')
    P(f'v_readfirstlane_b32 s{T1}, v0')
    P.need('xn')
    P('s_barrier')
    P(f's_cmp_ge_u32 s{T1}, 256')
    P('s_cbranch_scc1 ka_done')
    for ks in range(2):
        for b in range(5):
            for h in range(2):
                P(f'ds_read_b64_tr_b16 {v(X[ks][b] + 2 * h, 2)}, {v(vr)} offset:{(32 * ks + 16 * h) * 160 + 8 * b}')
    for ks in range(2):
        for b in range(5):
            mfma(P, v(Dm[b], 4), v(X[ks][b], 4), v(FA[ks], 4), v(Dm[b], 4) if ks else '0')
    for b in range(5):
        P(f'v_cvt_pk_bf16_f32 {v(PK + 2 * b)}, {v(Dm[b])}, {v(Dm[b] + 1)}')
        P(f'v_cvt_pk_bf16_f32 {v(PK + 2 * b + 1)}, {v(Dm[b] + 2)}, {v(Dm[b] + 3)}')
    P(f'buffer_store_dwordx4 {v(PK, 4)}, {v(vs)}, {s(WS, 4)}, s{T0} offen')
    P(f'buffer_store_dwordx4 {v(PK + 4, 4)}, {v(vs)}, {s(WS, 4)}, s{T0} offen offset:16')
    P(f'buffer_store_dwordx2 {v(PK + 8, 2)}, {v(vs)}, {s(WS, 4)}, s{T0} offen offset:32')
    P.label('ka_done')
    P('s_endpgm')

    P.label('ka_pf')
    code_prefetch(P, SRC, 1, 8, 'ka_gv', 'code_end', 512, 3, guard=False)
    P('v_lshlrev_b32 v2, 2, v0')
    P('v_mov_b32 v3, 0')
    P(f's_lshl_b32 s{T0}, s2, 11')
    P(f's_add_u32 s{T0}, s{T0}, {STAT_OFF}')
    P(f'buffer_store_dword v3, v2, {s(WS, 4)}, s{T0} offen')
    P('s_endpgm')

    P.label('ka_gv')
    P(f's_cmp_ge_u32 s2, {KA_GV + 60}')
    P('s_cbranch_scc1 ka_done')
    srd(P, SRC, KA_WMOD, 640 * 7680)
    srd(P, TB, KA_C, 1280)
    A = Alloc(1, 128)
    vrs, vo, vc = A.get(), A.get(), A.get()
    C4 = A.get(4)
    C1 = A.get()
    W = [A.get(4) for _ in range(10)]
    acc = A.get(8)
    sv = A.get(10)
    ev = A.get(10)
    pk = A.get(5)
    tt = A.get(2)
    GI = 16
    P(f's_sub_u32 s{GI}, s2, {KA_GV}')
    P(f'v_lshrrev_b32 {v(vrs)}, 3, v0')
    P(f'v_mul_u32_u24 {v(vc)}, 20, {v(vrs)}')
    P(f'v_mul_u32_u24 {v(vo)}, 76800, {v(vrs)}')
    P(f'v_and_b32 {v(tt)}, 7, v0')
    P(f'v_lshl_add_u32 {v(vo)}, {v(tt)}, 4, {v(vo)}')
    P(f's_lshl_b32 s{T0}, s{GI}, 7')
    P(f'buffer_load_dwordx4 {v(C4, 4)}, {v(vc)}, {s(TB, 4)}, 0 offen')
    P(f'buffer_load_dword {v(C1)}, {v(vc)}, {s(TB, 4)}, 0 offen offset:16')
    for i in range(10):
        P(f'buffer_load_dwordx4 {v(W[i], 4)}, {v(vo)}, {s(SRC, 4)}, s{T0} offen')
        if i < 9:
            P(f's_add_u32 s{T0}, s{T0}, 7680')
    for k in range(8):
        P(f'v_mov_b32 {v(acc + k)}, 0')
    P(f's_mov_b32 s{T2}, 0x05040100')
    P(f's_mov_b32 s{T3}, 0x07060302')
    for p in range(5):
        unpack(P, sv + 2 * p, sv + 2 * p + 1, C4 + p if p < 4 else C1)
    for k in range(10):
        P(f'v_mul_f32 {v(ev + k)}, {fl(-LOG2E)}, {v(sv + k)}')
    for k in range(10):
        P(f'v_exp_f32 {v(ev + k)}, {v(ev + k)}')
    for k in range(10):
        P(f'v_add_f32 {v(ev + k)}, 1.0, {v(ev + k)}')
    for k in range(10):
        P(f'v_rcp_f32 {v(ev + k)}, {v(ev + k)}')
    for k in range(10):
        P(f'v_mul_f32 {v(sv + k)}, {v(sv + k)}, {v(ev + k)}')
    for p in range(5):
        P(f'v_cvt_pk_bf16_f32 {v(pk + p)}, {v(sv + 2 * p)}, {v(sv + 2 * p + 1)}')
    for p in range(5):
        for k in range(4):
            P(f'v_perm_b32 {v(ev + 2 * k)}, {v(W[2 * p + 1] + k)}, {v(W[2 * p] + k)}, s{T2}')
            P(f'v_perm_b32 {v(ev + 2 * k + 1)}, {v(W[2 * p + 1] + k)}, {v(W[2 * p] + k)}, s{T3}')
        for k in range(8):
            P(f'v_dot2c_f32_bf16 {v(acc + k)}, {v(ev + k)}, {v(pk + p)}')
    for k in range(4):
        P(f'v_permlane32_swap_b32 {v(acc + k)}, {v(acc + k + 4)}')
    for k in range(4):
        P(f'v_add_f32 {v(acc + k)}, {v(acc + k)}, {v(acc + k + 4)}')
    for k in range(2):
        P(f'v_permlane16_swap_b32 {v(acc + k)}, {v(acc + k + 2)}')
    for k in range(2):
        P(f'v_add_f32 {v(acc + k)}, {v(acc + k)}, {v(acc + k + 2)}')
    dpp_add(P, acc, acc, acc, 'row_ror:8', bank=0x3)
    dpp_add(P, acc, acc + 1, acc + 1, 'row_ror:8', bank=0xc)
    P(f'v_bfe_u32 {v(vo)}, v0, 5, 1')
    P(f'v_lshl_add_u32 {v(vo)}, {v(tt)}, 1, {v(vo)}')
    P(f'v_bfe_u32 {v(vc)}, v0, 4, 1')
    P(f'v_lshl_add_u32 {v(vo)}, {v(vo)}, 1, {v(vc)}')
    P(f'v_bfe_u32 {v(vc)}, v0, 3, 1')
    P(f'v_lshl_add_u32 {v(vo)}, {v(vo)}, 1, {v(vc)}')
    P(f'v_lshrrev_b32 {v(vc)}, 6, v0')
    P(f'v_lshlrev_b32 {v(vc)}, 2, {v(vc)}')
    P(f'v_lshl_add_u32 {v(vo)}, {v(vo)}, 5, {v(vc)}')
    P(f'ds_write_b32 {v(vo)}, {v(acc)}', tw=['part'])
    P(f'v_readfirstlane_b32 s{T1}, v0')
    P(f'v_lshlrev_b32 {v(vo)}, 5, v0')
    P.need('part')
    P('s_barrier')
    P(f's_cmp_ge_u32 s{T1}, 64')
    P('s_cbranch_scc1 ka_done')
    P(f'ds_read_b128 {v(W[0], 4)}, {v(vo)}')
    P(f'ds_read_b128 {v(W[1], 4)}, {v(vo)} offset:16')
    for k in range(4):
        P(f'v_add_f32 {v(W[0] + k)}, {v(W[0] + k)}, {v(W[1] + k)}')
    P(f'v_add_f32 {v(W[0])}, {v(W[0])}, {v(W[0] + 1)}')
    P(f'v_add_f32 {v(W[0] + 2)}, {v(W[0] + 2)}, {v(W[0] + 3)}')
    P(f'v_add_f32 {v(W[0])}, {v(W[0])}, {v(W[0] + 2)}')
    P(f'v_cvt_pk_bf16_f32 {v(W[0])}, {v(W[0])}, {v(W[0])}')
    P(f'v_and_b32 {v(W[0])}, 0xffff0000, {v(W[0])}')
    P(f's_mov_b32 s{T1}, 0')
    P(f's_sub_u32 s{T0}, s{GI}, 10')
    P(f's_cmp_lt_u32 s{T0}, 10')
    P(f's_cselect_b32 s{T1}, 1.0, s{T1}')
    P(f's_sub_u32 s{T0}, s{GI}, 40')
    P(f's_cmp_lt_u32 s{T0}, 10')
    P(f's_cselect_b32 s{T1}, 1.0, s{T1}')
    P(f'v_add_f32 {v(W[0])}, s{T1}, {v(W[0])}')
    P(f'v_cvt_pk_bf16_f32 {v(W[0])}, {v(W[0])}, {v(W[0])}')
    P(f'v_and_b32 {v(W[0])}, 0xffff0000, {v(W[0])}')
    P(f'v_lshlrev_b32 {v(vo)}, 2, v0')
    P(f's_lshl_b32 s{T0}, s{GI}, 8')
    P(f's_add_u32 s{T0}, s{T0}, {MOD_OFF}')
    P(f'buffer_store_dword {v(W[0])}, {v(vo)}, {s(WS, 4)}, s{T0} offen')
    P('s_endpgm')

    P.label('ka_re')
    P(f's_cmp_ge_u32 s2, {KA_WO}')
    P('s_cbranch_scc1 ka_wo')
    srd(P, SRC, KA_WIN, 640 * 3456)
    A = Alloc(1, 128)
    vrl, vu, vo, vw, vr, vt = [A.get() for _ in range(6)]
    W = [A.get(2) for _ in range(8)]
    Fr = [A.get(4) for _ in range(5)]
    NT, KQ = 16, 17
    P(f's_sub_u32 s{T0}, s2, {KA_WI}')
    P(f's_and_b32 s{NT}, s{T0}, 15')
    P(f's_lshr_b32 s{KQ}, s{T0}, 4')
    P(f'v_lshrrev_b32 {v(vrl)}, 5, v0')
    P(f'v_and_b32 {v(vu)}, 31, v0')
    P(f'v_mul_u32_u24 {v(vo)}, 3456, {v(vrl)}')
    P(f'v_lshl_add_u32 {v(vo)}, {v(vu)}, 3, {v(vo)}')
    P(f'v_mov_b32 {v(vt)}, {OOB:#x}')
    P(f'v_cmp_gt_u32 vcc, 27, {v(vu)}')
    P(f's_mul_i32 s{T0}, s{KQ}, {128 * 3456}')
    P(f's_mul_i32 s{T1}, s{NT}, 216')
    P(f'v_cndmask_b32 {v(vo)}, {v(vt)}, {v(vo)}, vcc')
    P(f's_add_u32 s{T0}, s{T0}, s{T1}')
    for i in range(8):
        P(f'buffer_load_dwordx2 {v(W[i], 2)}, {v(vo)}, {s(SRC, 4)}, s{T0} offen')
        if i < 7:
            P(f's_add_u32 s{T0}, s{T0}, {16 * 3456}')
    P(f'v_mul_u32_u24 {v(vw)}, 272, {v(vrl)}')
    P(f'v_lshl_add_u32 {v(vw)}, {v(vu)}, 3, {v(vw)}')
    P(f'v_readfirstlane_b32 s{T1}, v0')
    P(f's_lshr_b32 s{T1}, s{T1}, 6')
    P(f'v_bfe_u32 {v(vr)}, v0, 4, 2')
    P(f'v_bfe_u32 {v(vt)}, v0, 2, 2')
    P(f'v_lshl_add_u32 {v(vr)}, {v(vr)}, 3, {v(vt)}')
    P(f'v_mul_u32_u24 {v(vr)}, 272, {v(vr)}')
    P(f's_lshr_b32 s{T2}, s{T1}, 1')
    P(f's_lshl_b32 s{T2}, s{T2}, 6')
    P(f's_and_b32 s{T3}, s{T1}, 1')
    P(f's_lshl3_add_u32 s{T2}, s{T3}, s{T2}')
    P(f's_cmp_lt_u32 s{T1}, 6')
    P(f's_cselect_b32 s{T3}, 4, 3')
    P(f'v_and_b32 {v(vt)}, 3, v0')
    P(f'v_lshlrev_b32 {v(vt)}, s{T3}, {v(vt)}')
    P(f'v_add3_u32 {v(vr)}, {v(vr)}, {v(vt)}, s{T2}')
    P(f'v_and_b32 {v(vo)}, 63, v0')
    P(f'v_lshlrev_b32 {v(vo)}, 4, {v(vo)}')
    P(f's_mul_i32 s{T0}, s{NT}, 20')
    P(f's_lshl2_add_u32 s{T0}, s{KQ}, s{T0}')
    P(f's_mul_i32 s{T0}, s{T0}, 7')
    P(f's_add_u32 s{T0}, s{T0}, s{T1}')
    P(f's_lshl_b32 s{T0}, s{T0}, 10')
    P(f's_add_u32 s{T0}, s{T0}, {WIN_OFF}')
    for i in range(8):
        P(f'ds_write_b64 {v(vw)}, {v(W[i], 2)} offset:{i * 16 * 272}', tw=['img'])
    P.need('img')
    P('s_barrier')
    P(f's_cmp_ge_u32 s{T1}, 7')
    P('s_cbranch_scc1 ka_done')
    for k in range(4):
        for h in range(2):
            P(f'ds_read_b64_tr_b16 {v(Fr[k] + 2 * h, 2)}, {v(vr)} offset:{(32 * k + 4 * h) * 272}')
    for k in range(4):
        P(f'buffer_store_dwordx4 {v(Fr[k], 4)}, {v(vo)}, {s(WS, 4)}, s{T0} offen')
        if k < 3:
            P(f's_add_u32 s{T0}, s{T0}, 7168')
    P('s_endpgm')

    P.label('ka_wo')
    P(f's_cmp_ge_u32 s2, {KA_END}')
    P('s_cbranch_scc1 ka_done')
    srd(P, SRC, KA_WOUT, 864 * 1280)
    assert all((f * 1171) >> 17 == f // 112 for f in range(896))
    W = [A.get(4) for _ in range(5)]
    KS = 16
    P(f's_sub_u32 s{KS}, s2, {KA_WO}')
    P(f's_lshl_b32 s{T0}, s{KS}, 5')
    P(f'v_lshrrev_b32 {v(vrl)}, 4, v0')
    P(f'v_add_u32 {v(vo)}, s{T0}, {v(vrl)}')
    P(f'v_mul_u32_u24 {v(vt)}, 1171, {v(vo)}')
    P(f'v_lshrrev_b32 {v(vt)}, 17, {v(vt)}')
    P(f'v_mul_u32_u24 {v(vu)}, 112, {v(vt)}')
    P(f'v_sub_u32 {v(vu)}, {v(vo)}, {v(vu)}')
    P(f'v_cmp_gt_u32 vcc, 108, {v(vu)}')
    P(f'v_lshlrev_b32 {v(vt)}, 2, {v(vt)}')
    P(f'v_sub_u32 {v(vo)}, {v(vo)}, {v(vt)}')
    P(f'v_mul_u32_u24 {v(vo)}, 1280, {v(vo)}')
    P(f'v_and_b32 {v(vu)}, 15, v0')
    P(f'v_lshl_add_u32 {v(vo)}, {v(vu)}, 4, {v(vo)}')
    P(f'v_mov_b32 {v(vt)}, {OOB:#x}')
    P(f'v_cndmask_b32 {v(vo)}, {v(vt)}, {v(vo)}, vcc')
    for i in range(5):
        P(f'buffer_load_dwordx4 {v(W[i], 4)}, {v(vo)}, {s(SRC, 4)}, 0 offen offset:{256 * i}')
    P(f'v_mul_u32_u24 {v(vw)}, 1296, {v(vrl)}')
    P(f'v_lshl_add_u32 {v(vw)}, {v(vu)}, 4, {v(vw)}')
    P(f'v_readfirstlane_b32 s{T1}, v0')
    P(f's_lshr_b32 s{T1}, s{T1}, 6')
    P(f'v_bfe_u32 {v(vr)}, v0, 4, 2')
    P(f'v_bfe_u32 {v(vt)}, v0, 2, 2')
    P(f'v_lshl_add_u32 {v(vr)}, {v(vr)}, 3, {v(vt)}')
    P(f'v_mul_u32_u24 {v(vr)}, 1296, {v(vr)}')
    P(f'v_and_b32 {v(vt)}, 3, v0')
    P(f'v_lshlrev_b32 {v(vt)}, 3, {v(vt)}')
    P(f's_mul_i32 s{T2}, s{T1}, 160')
    P(f'v_add3_u32 {v(vr)}, {v(vr)}, {v(vt)}, s{T2}')
    P(f'v_and_b32 {v(vo)}, 63, v0')
    P(f'v_lshlrev_b32 {v(vo)}, 4, {v(vo)}')
    P(f's_mul_i32 s{T0}, s{T1}, 28')
    P(f's_add_u32 s{T0}, s{T0}, s{KS}')
    P(f's_mul_i32 s{T0}, s{T0}, 5120')
    P(f's_add_u32 s{T0}, s{T0}, {WOUT_OFF}')
    P(f's_add_u32 s{T2}, s{T0}, 4096')
    for i in range(5):
        P(f'ds_write_b128 {v(vw)}, {v(W[i], 4)} offset:{256 * i}', tw=['img2'])
    P.need('img2')
    P('s_barrier')
    for nb in range(5):
        for h in range(2):
            P(f'ds_read_b64_tr_b16 {v(Fr[nb] + 2 * h, 2)}, {v(vr)} offset:{4 * h * 1296 + 32 * nb}')
    for nb in range(5):
        if nb < 4:
            P(f'buffer_store_dwordx4 {v(Fr[nb], 4)}, {v(vo)}, {s(WS, 4)}, s{T0} offen offset:{1024 * nb}')
        else:
            P(f'buffer_store_dwordx4 {v(Fr[nb], 4)}, {v(vo)}, {s(WS, 4)}, s{T2} offen')
    P('s_endpgm')
    return P


KB_MOD, KB_CT, KB_G = 83968, 98304, 114688
GS = 1288
KB_LDS = KB_G + 16 * GS


def gen_kb():
    P = Prog('kb_kernel')
    WS, XS, TB, SP, PF = 4, 8, 12, 16, 20
    T2, JJ, W, TBK, T0, T1, TT, AM0, AM1, SH1, DC = range(24, 35)
    P('s_cmp_ge_u32 s2, 256')
    P('s_cbranch_scc1 kb_done')
    srd(P, WS, KA_WS, WS_END)
    srd(P, XS, KA_X, S * 1280)
    srd(P, SP, KA_WSP, S * 4096)
    pcsrd(P, TB, 'ctab', 16384)
    A = Alloc(1, 256)
    vl, vl16, vt, vu = [A.get() for _ in range(4)]
    P(f'v_readfirstlane_b32 s{W}, v0')
    P(f'v_and_b32 {v(vl)}, 63, v0')
    P(f'v_lshlrev_b32 {v(vl16)}, 4, {v(vl)}')
    P(f's_and_b32 s{T2}, s2, 7')
    P(f's_bfe_u32 s{T0}, s2, 0x30003')
    P(f's_lshl3_add_u32 s{T2}, s{T2}, s{T0}')
    P(f's_lshr_b32 s{JJ}, s2, 6')
    P(f's_lshr_b32 s{W}, s{W}, 6')
    P(f's_sub_u32 s{T0}, 64, s{T2}')
    P(f's_min_u32 s{TBK}, s{T0}, s{T2}')
    P(f's_and_b32 s{TBK}, s{TBK}, 31')
    P(f's_mul_i32 s{TBK}, s{TBK}, {T_BLK}')
    if T_OFF:
        P(f's_add_u32 s{TBK}, s{TBK}, {T_OFF}')
    P(f's_mul_i32 s{T0}, s{W}, 10240')
    P(f's_mov_b32 m0, s{T0}')
    P(f's_add_u32 s{T0}, s{T0}, s{TBK}')
    for i in range(10):
        if i and i % 4 == 0:
            P('s_add_u32 m0, m0, 4096')
            P(f's_add_u32 s{T0}, s{T0}, 4096')
        P(f'buffer_load_dwordx4 {v(vl16)}, {s(WS, 4)}, s{T0} offen offset:{1024 * (i % 4)} lds', tw=['T'])
    P(f's_lshl_b32 s{T1}, s{W}, 11')
    P(f's_add_u32 m0, s{T1}, 81920')
    P(f's_add_u32 s{T0}, s{TBK}, 81920')
    P(f's_add_u32 s{TT}, s{T1}, {MOD_OFF - 2048}')
    P(f's_cmp_eq_u32 s{W}, 0')
    P(f's_cselect_b32 s{T0}, s{T0}, s{TT}')
    for e in range(2):
        P(f'buffer_load_dwordx4 {v(vl16)}, {s(WS, 4)}, s{T0} offen offset:{1024 * e} lds', tw=['T'])
    P(f's_add_u32 m0, s{T1}, {KB_CT}')
    for e in range(2):
        P(f'buffer_load_dwordx4 {v(vl16)}, {s(TB, 4)}, s{T1} offen offset:{1024 * e} lds', tw=['CT'])
    XR = [A.get(4) for _ in range(2)]
    vx = A.get()
    P(f's_lshl3_add_u32 s{TT}, s{JJ}, s{W}')
    P(f's_lshl_b32 s{TT}, s{TT}, 6')
    P(f's_add_u32 s{TT}, s{TT}, s{T2}')
    P(f'v_mov_b32 {v(vt)}, {OOB:#x}')
    P(f'v_cmp_gt_u32 vcc, 40, {v(vl)}')
    P(f's_mul_i32 s{T0}, s{TT}, 1280')
    P(f'v_cndmask_b32 {v(vx)}, {v(vt)}, {v(vl16)}, vcc')
    for e in range(2):
        P(f'buffer_load_dwordx4 {v(XR[e], 4)}, {v(vx)}, {s(XS, 4)}, s{T0} offen offset:{640 * e}')
    PFR = [A.get(4) for _ in range(4)]
    P(f'v_lshlrev_b32 {v(vt)}, 4, v0')
    P(f's_lshl_b32 s{T1}, s2, 15')
    for e in range(4):
        P(f'buffer_load_dwordx4 {v(PFR[e], 4)}, {v(vt)}, {s(SP, 4)}, s{T1} offen')
        if e < 3:
            P(f's_add_u32 s{T1}, s{T1}, 8192')
    PFC = A.get(1)
    code_prefetch(P, PF, vt, PFC, 'kw_kernel', 'ks_kernel', 512, 1)
    CF = [A.get(4) for _ in range(2)]
    va, vb0, vb1, vg = [A.get() for _ in range(4)]
    cv = A.get(8)
    P(f's_cmp_eq_u32 s{T2}, 32')
    P(f's_cselect_b32 s{AM0}, 0, -1')
    P(f's_cselect_b32 s{SH1}, 0, {fl(-0.25)}')
    P(f's_cmp_gt_u32 s{T2}, 32')
    P(f's_cselect_b32 s{SH1}, {fl(0.25)}, s{SH1}')
    P(f's_cmp_eq_u32 s{T2}, 0')
    P(f's_cselect_b32 s{AM1}, 0, -1')
    P('s_cmp_eq_u32 s2, 0')
    P(f's_cselect_b32 s{DC}, {fl(2048.0)}, 0')
    P(f's_lshl_b32 s{T0}, s{JJ}, 9')
    P(f's_add_u32 s{T0}, s{T0}, s{T2}')
    P(f'v_bfe_u32 {v(va)}, v0, 1, 3')
    P(f'v_lshl_add_u32 {v(va)}, {v(va)}, 6, s{T0}')
    P(f'v_cvt_f32_u32 {v(va)}, {v(va)}')
    P(f'v_mul_f32 {v(va)}, {fl(1.0 / 2048)}, {v(va)}')
    P(f'v_bfe_u32 {v(vg)}, v0, 4, 2')
    P(f'v_cvt_f32_u32 {v(vb0)}, {v(vg)}')
    P(f'v_mul_f32 {v(vb0)}, 4.0, {v(vb0)}')
    P(f'v_and_b32 {v(vt)}, 1, v0')
    P(f'v_cvt_f32_u32 {v(vt)}, {v(vt)}')
    P(f'v_mul_f32 {v(vt)}, {fl(0.25)}, {v(vt)}')
    P(f'v_fma_f32 {v(vb0)}, {v(vb0)}, {v(va)}, {v(vt)}')
    P(f'v_add_f32 {v(vb1)}, s{SH1}, {v(vb0)}')
    for ks in range(2):
        vb = (vb0, vb1)[ks]
        for q in range(8):
            kk = 16 * (q >> 2) + (q & 3)
            if kk:
                P(f'v_fmamk_f32 {v(cv + q)}, {v(va)}, {fl(kk)}, {v(vb)}')
        for q in range(8):
            P(f'v_cos_f32 {v(cv + q)}, {v(cv + q if q else vb)}')
        for k in range(4):
            P(f'v_cvt_pk_bf16_f32 {v(CF[ks] + k)}, {v(cv + 2 * k)}, {v(cv + 2 * k + 1)}')
        for k in range(4):
            P(f'v_and_b32 {v(CF[ks] + k)}, s{(AM0, AM1)[ks]}, {v(CF[ks] + k)}')
    vr1, vm1, vgw, vdc, vra0, vra1, vzw, vzr, vyw, vyr, vh = [A.get() for _ in range(11)]
    P(f's_mul_i32 s{T0}, s{W}, 160')
    P(f'v_lshrrev_b32 {v(vt)}, 2, {v(vl)}')
    P(f'v_mul_u32_u24 {v(vr1)}, {T_ROW}, {v(vt)}')
    P(f'v_and_b32 {v(vu)}, 3, v0')
    P(f'v_lshlrev_b32 {v(vu)}, 3, {v(vu)}')
    P(f'v_add3_u32 {v(vr1)}, {v(vr1)}, {v(vu)}, s{T0}')
    P(f's_lshl_b32 s{T1}, s{T0}, 1')
    P(f's_add_u32 s{T1}, s{T1}, {KB_MOD}')
    P(f'v_lshl_add_u32 {v(vm1)}, {v(vg)}, 4, s{T1}')
    P(f'v_and_b32 {v(vh)}, 15, v0')
    P(f'v_mul_u32_u24 {v(vgw)}, {GS}, {v(vh)}')
    P(f'v_lshl_add_u32 {v(vgw)}, {v(vg)}, 3, {v(vgw)}')
    P(f's_add_u32 s{T0}, s{T0}, {KB_G}')
    P(f'v_add_u32 {v(vgw)}, s{T0}, {v(vgw)}')
    P(f'v_cmp_eq_u32 vcc, 0, {v(vh)}')
    P(f'v_mov_b32 {v(vdc)}, s{DC}')
    P(f'v_cndmask_b32 {v(vdc)}, 0, {v(vdc)}, vcc')
    P(f's_mul_i32 s{T0}, s{W}, {2 * GS}')
    P(f's_add_u32 s{T0}, s{T0}, {KB_G}')
    P(f'v_lshl_add_u32 {v(vra0)}, {v(vt)}, 6, {v(vu)}')
    P(f'v_add_u32 {v(vra0)}, s{T0}, {v(vra0)}')
    P(f'v_and_b32 {v(vt)}, 3, {v(vt)}')
    P(f'v_lshl_add_u32 {v(vra1)}, {v(vt)}, 6, {v(vu)}')
    P(f's_add_u32 s{T0}, s{T0}, 1024')
    P(f'v_add_u32 {v(vra1)}, s{T0}, {v(vra1)}')
    P(f's_lshl_b32 s{T0}, s{W}, 13')
    P(f'v_mul_u32_u24 {v(vzw)}, 288, {v(vg)}')
    P(f'v_lshl_add_u32 {v(vzw)}, {v(vh)}, 2, {v(vzw)}')
    P(f'v_add_u32 {v(vzw)}, s{T0}, {v(vzw)}')
    P(f'v_mul_u32_u24 {v(vzr)}, 144, {v(vh)}')
    P(f'v_lshl_add_u32 {v(vzr)}, {v(vg)}, 4, {v(vzr)}')
    P(f'v_add_u32 {v(vzr)}, s{T0}, {v(vzr)}')
    P(f's_add_u32 s{T0}, s{T0}, 4608')
    P(f'v_mul_u32_u24 {v(vyw)}, 80, {v(vh)}')
    P(f'v_lshl_add_u32 {v(vyw)}, {v(vg)}, 4, {v(vyw)}')
    P(f'v_add_u32 {v(vyw)}, s{T0}, {v(vyw)}')
    P(f'v_min_u32 {v(vt)}, 39, {v(vl)}')
    P(f'v_lshlrev_b32 {v(vt)}, 5, {v(vt)}')
    P(f'v_add_u32 {v(vyr)}, s{T0}, {v(vt)}')
    vmr = A.get()
    P(f'v_add_u32 {v(vmr)}, {KB_MOD}, {v(vt)}')
    TF = [[A.get(4) for ks in range(2)] for mb in range(5)]
    D1 = [A.get(4) for mb in range(5)]
    MC = [[A.get(4) for ks in range(2)] for mb in range(5)]
    GA, CBR, SBR = A.get(16), A.get(16), A.get(16)
    vct = A.get()
    P(f'v_add_u32 {v(vct)}, {KB_CT}, {v(vl16)}')
    P.need('T')
    P('s_barrier')
    for mb in range(5):
        for ks in range(2):
            for h in range(2):
                P(f'ds_read_b64_tr_b16 {v(TF[mb][ks] + 2 * h, 2)}, {v(vr1)} offset:{(32 * ks + 16 * h) * T_ROW + 32 * mb}')
    for mb in range(5):
        P(f'ds_read_b128 {v(MC[mb][0], 4)}, {v(vm1)} offset:{2560 + 64 * mb}')
        P(f'ds_read_b128 {v(MC[mb][1], 4)}, {v(vm1)} offset:{64 * mb}')
    for mb in range(5):
        for ks in range(2):
            mfma(P, v(D1[mb], 4), v(TF[mb][ks], 4), v(CF[ks], 4), v(D1[mb], 4) if ks else '0')
    for mb in range(5):
        for i in range(4):
            P(f'v_mul_f32 {v(MC[mb][1] + i)}, {v(MC[mb][1] + i)}, {v(vdc)}')
    for mb in range(5):
        for i in range(4):
            P(f'v_fma_f32 {v(D1[mb] + i)}, {v(D1[mb] + i)}, {v(MC[mb][0] + i)}, {v(MC[mb][1] + i)}')
        P(f'v_cvt_pk_bf16_f32 {v(D1[mb])}, {v(D1[mb])}, {v(D1[mb] + 1)}')
        P(f'v_cvt_pk_bf16_f32 {v(D1[mb] + 1)}, {v(D1[mb] + 2)}, {v(D1[mb] + 3)}')
        P(f'ds_write_b64 {v(vgw)}, {v(D1[mb], 2)} offset:{32 * mb}', tw=['G'])
    P.need('G', 'CT')
    P('s_barrier')
    pool = [r for x in TF for r in x] + D1 + [r for x in MC for r in x]
    GF = [[pool.pop() for cp in range(2)] for nb in range(2)]
    CA = [[pool.pop() for cp in range(2)] for mb in range(3)]
    TW = [[pool.pop() for nb in range(2)] for mb in range(3)]
    CB = [[pool.pop() for ks in range(2)] for nb in range(2)]
    DA = [[A.get(4) for nb in range(2)] for mb in range(3)]
    for cp in range(2):
        for nb in range(2):
            P(f'ds_read_b64_tr_b16 {v(GF[nb][cp], 2)}, {v(vra0)} offset:{cp * GS + 32 * nb}')
            P(f'ds_read_b64_tr_b16 {v(GF[nb][cp] + 2, 2)}, {v(vra1)} offset:{cp * GS + 32 * nb}')
        for mb in range(3):
            P(f'ds_read_b128 {v(CA[mb][cp], 4)}, {v(vct)} offset:{CT_CA + 1024 * (2 * mb + cp)}')
    for mb in range(3):
        for nb in range(2):
            P(f'ds_read_b128 {v(TW[mb][nb], 4)}, {v(vct)} offset:{CT_TW + 1024 * (2 * mb + nb)}')
    for cp in range(2):
        for mb in range(3):
            for nb in range(2):
                mfma(P, v(DA[mb][nb], 4), v(CA[mb][cp], 4), v(GF[nb][cp], 4), v(DA[mb][nb], 4) if cp else '0')
    for nb in range(2):
        for ks in range(2):
            P(f'ds_read_b128 {v(CB[nb][ks], 4)}, {v(vct)} offset:{CT_CB + 1024 * (2 * nb + ks)}')
    for e in range(2):
        for k in range(2):
            P(f'ds_read_b128 {v(GA + 8 * e + 4 * k, 4)}, {v(vmr)} offset:{2 * 2560 + 1280 * e + 16 * k}')
    for mb in range(3):
        for nb in range(2):
            d, t = DA[mb][nb], TW[mb][nb]
            for p in range(2):
                P(f'v_mul_f32 {v(cv + 2 * p)}, {v(d + 2 * p)}, {v(t + 2 * p)}')
                P(f'v_mul_f32 {v(cv + 2 * p + 1)}, {v(d + 2 * p + 1)}, {v(t + 2 * p)}')
            for p in range(2):
                P(f'v_fmac_f32 {v(cv + 2 * p)}, {v(d + 2 * p + 1)}, {v(t + 2 * p + 1)}')
                P(f'v_fma_f32 {v(cv + 2 * p + 1)}, -{v(d + 2 * p)}, {v(t + 2 * p + 1)}, {v(cv + 2 * p + 1)}')
            for p in range(2):
                P(f'v_cvt_pk_bf16_f32 {v(d + p)}, {v(cv + 2 * p)}, {v(cv + 2 * p + 1)}')
            for p in range(2):
                P(f'ds_write_b32 {v(vzw)}, {v(d + p)} offset:{(8 * mb + p) * 144 + 64 * nb}')
    ZF = [[GF[mb][ks] for ks in range(2)] for mb in range(2)]
    DB = [[CA[mb][nb] for nb in range(2)] for mb in range(2)]
    Y = DA[0][0]
    assert DA[1][1] == Y + 12
    for ks in range(2):
        for mb in range(2):
            P(f'ds_read_b128 {v(ZF[mb][ks], 4)}, {v(vzr)} offset:{16 * 144 * mb + 64 * ks}')
    for e in range(2):
        for k in range(2):
            P(f'ds_read_b128 {v(CBR + 8 * e + 4 * k, 4)}, {v(vmr)} offset:{4 * 2560 + 1280 * e + 16 * k}')
            P(f'ds_read_b128 {v(SBR + 8 * e + 4 * k, 4)}, {v(vmr)} offset:{3 * 2560 + 1280 * e + 16 * k}')
    for ks in range(2):
        for mb in range(2):
            for nb in range(2):
                mfma(P, v(DB[mb][nb], 4), v(ZF[mb][ks], 4), v(CB[nb][ks], 4), v(DB[mb][nb], 4) if ks else '0')
    for nb in range(2):
        P(f'ds_write_b128 {v(vyw)}, {v(DB[0][nb], 4)} offset:{1280 * nb}')
    P('s_mov_b64 exec, 0xffff')
    for nb in range(2):
        P(f'ds_write_b128 {v(vyw)}, {v(DB[1][nb], 4)} offset:{1280 * nb + 64}')
    P('s_mov_b64 exec, -1')
    for e in range(2):
        for k in range(2):
            P(f'ds_read_b128 {v(Y + 8 * e + 4 * k, 4)}, {v(vyr)} offset:{1280 * e + 16 * k}')
    sm, sq = cv + 4, cv + 5
    for e in range(2):
        for k in range(4):
            unpack(P, cv, cv + 1, XR[e] + k)
            y = Y + 8 * e + 2 * k
            P(f'v_fma_f32 {v(y)}, {v(y)}, {v(GA + 8 * e + 2 * k)}, {v(cv)}')
            P(f'v_fma_f32 {v(y + 1)}, {v(y + 1)}, {v(GA + 8 * e + 2 * k + 1)}, {v(cv + 1)}')
            P(f'v_cvt_pk_bf16_f32 {v(XR[e] + k)}, {v(y)}, {v(y + 1)}')
    P(f's_mul_i32 s{T0}, s{TT}, 1280')
    P(f's_add_u32 s{T0}, s{T0}, {X1_OFF}')
    for e in range(2):
        P(f'buffer_store_dwordx4 {v(XR[e], 4)}, {v(vx)}, {s(WS, 4)}, s{T0} offen offset:{640 * e}')
    P(f'v_add_f32 {v(sm)}, {v(Y)}, {v(Y + 1)}')
    P(f'v_mul_f32 {v(sq)}, {v(Y)}, {v(Y)}')
    P(f'v_fmac_f32 {v(sq)}, {v(Y + 1)}, {v(Y + 1)}')
    for k in range(2, 16):
        P(f'v_add_f32 {v(sm)}, {v(sm)}, {v(Y + k)}')
        P(f'v_fmac_f32 {v(sq)}, {v(Y + k)}, {v(Y + k)}')
    P(f'v_cmp_gt_u32 vcc, 40, {v(vl)}')
    P(f'v_cndmask_b32 {v(sm)}, 0, {v(sm)}, vcc')
    P(f'v_cndmask_b32 {v(sq)}, 0, {v(sq)}, vcc')
    for ctl in ('row_ror:8', 'row_ror:4', 'row_ror:2', 'row_ror:1'):
        for r in (sm, sq):
            dpp_add(P, r, r, r, ctl)
    for ctl, row in (('row_bcast:15', 0xa), ('row_bcast:31', 0xc)):
        for r in (sm, sq):
            dpp_add(P, r, r, r, ctl, row=row)
    P(f'v_readlane_b32 s{T0}, {v(sm)}, 63')
    P(f'v_readlane_b32 s{T1}, {v(sq)}, 63')
    P(f'v_mov_b32 {v(sm)}, s{T0}')
    P(f'v_mov_b32 {v(sq)}, s{T1}')
    ln_finish(P, [(sm, sq)], 640, [cv])
    for k in range(16):
        P(f'v_fma_f32 {v(Y + k)}, {v(Y + k)}, {v(sq)}, {v(sm)}')
    for k in range(16):
        P(f'v_fma_f32 {v(Y + k)}, {v(Y + k)}, {v(CBR + k)}, {v(SBR + k)}')
    for k in range(8):
        P(f'v_cvt_pk_bf16_f32 {v(GA + k)}, {v(Y + 2 * k)}, {v(Y + 2 * k + 1)}')
    P(f's_lshr_b32 s{T0}, s{TT}, 4')
    P(f's_mul_i32 s{T0}, s{T0}, 20480')
    P(f's_and_b32 s{T1}, s{TT}, 15')
    P(f's_lshl4_add_u32 s{T0}, s{T1}, s{T0}')
    P(f's_add_u32 s{T0}, s{T0}, {H2_OFF}')
    P(f's_add_u32 s{T1}, s{T0}, {40 * 256}')
    P(f'v_lshlrev_b32 {v(vt)}, 8, {v(vl)}')
    P(f'v_mov_b32 {v(vu)}, {OOB:#x}')
    P(f'v_cndmask_b32 {v(vt)}, {v(vu)}, {v(vt)}, vcc')
    P(f'buffer_store_dwordx4 {v(GA, 4)}, {v(vt)}, {s(WS, 4)}, s{T0} offen')
    P(f'buffer_store_dwordx4 {v(GA + 4, 4)}, {v(vt)}, {s(WS, 4)}, s{T1} offen')
    P.label('kb_done')
    P('s_endpgm')
    return P


KW_LDS = 143360
GC0 = -2.0 * LOG2E * 0.7978845608028654
GC1 = GC0 * 0.044715


def gelu_group(P, xs, tmp, sc1, vc0):
    ts = [tmp + 2 * i for i in range(len(xs))]
    for x, t in zip(xs, ts):
        P(f'v_pk_mul_f32 {v(t, 2)}, {v(x, 2)}, {v(x, 2)}')
    for x, t in zip(xs, ts):
        P(f'v_pk_fma_f32 {v(t, 2)}, {v(t, 2)}, {s(sc1, 2)}, {v(vc0, 2)}')
    for x, t in zip(xs, ts):
        P(f'v_pk_mul_f32 {v(t, 2)}, {v(t, 2)}, {v(x, 2)}')
    for x, t in zip(xs, ts):
        P(f'v_exp_f32 {v(t)}, {v(t)}')
        P(f'v_exp_f32 {v(t + 1)}, {v(t + 1)}')
    for x, t in zip(xs, ts):
        P(f'v_pk_add_f32 {v(t, 2)}, {v(t, 2)}, 1.0 op_sel_hi:[1,0]')
    for x, t in zip(xs, ts):
        P(f'v_rcp_f32 {v(t)}, {v(t)}')
        P(f'v_rcp_f32 {v(t + 1)}, {v(t + 1)}')
    for x, t in zip(xs, ts):
        P(f'v_pk_mul_f32 {v(x, 2)}, {v(x, 2)}, {v(t, 2)}')


def gen_kw():
    P = Prog('kw_kernel')
    WS, BS, PF = 4, 8, 12
    W, MT, J, PART, T0, T1, AO, C1, M1, M2 = 16, 17, 18, 19, 20, 21, 22, 24, 26, 28
    P('s_cmp_ge_u32 s2, 256')
    P('s_cbranch_scc1 kw_done')
    srd(P, WS, KA_WS, WS_END)
    A = Alloc(1, 256)
    vl16, va1, vt, vu, vb = [A.get() for _ in range(5)]
    vc0 = A.get(2)
    acc = [[A.get(4) for b in range(7)] for mb in range(2)]
    Bf = [[A.get(4) for b in range(7)] for _ in range(2)]
    tmp = A.get(8)
    pk = [A.get(4) for _ in range(2)]
    stt = A.get(16)
    PFC = A.get(4)
    Af = [[(ks * 2 + mb) * 4 for ks in range(20)] for mb in range(2)]
    P(f'v_readfirstlane_b32 s{W}, v0')
    P(f'v_and_b32 {v(vt)}, 63, v0')
    P(f'v_lshlrev_b32 {v(vl16)}, 4, {v(vt)}')
    P(f'v_add_u32 {v(va1)}, 20480, {v(vl16)}')
    P(f's_and_b32 s{T0}, s2, 3')
    P(f's_bfe_u32 s{T1}, s2, 0x20003')
    P(f's_lshl2_add_u32 s{MT}, s{T0}, s{T1}')
    P(f's_bfe_u32 s{PART}, s2, 0x10005')
    P(f's_bfe_u32 s{T0}, s2, 0x10002')
    P(f's_lshr_b32 s{T1}, s2, 6')
    P(f's_lshl2_add_u32 s{J}, s{T0}, s{T1}')
    P(f's_lshr_b32 s{W}, s{W}, 6')
    P(f's_lshl3_add_u32 s{T0}, s{PART}, s{J}')
    P(f's_mul_i32 s{T0}, s{T0}, 143360')
    P(f's_add_u32 s{T0}, s{T0}, {WIN_OFF}')
    P(f's_lshl2_add_u32 s{T1}, s{MT}, s{W}')
    P(f's_mul_i32 s{AO}, s{T1}, 40960')
    P(f's_add_u32 s{AO}, s{AO}, {H2_OFF}')
    P(f's_lshl_b32 m0, s{W}, 10')
    P(f's_add_u32 s{BS}, s{WS}, s{T0}')
    P(f's_addc_u32 s{BS + 1}, s{WS + 1}, 0')
    P(f's_mov_b32 s{BS + 2}, 143360')
    P(f's_mov_b32 s{BS + 3}, 0x20000')
    nb_issued = [0]

    def issue(ks):
        for mb in range(2):
            P(f'buffer_load_dwordx4 {a(Af[mb][ks], 4)}, {v((vl16, va1)[mb])}, {s(WS, 4)}, s{AO} offen offset:{1024 * (ks % 4)}')
        if ks % 4 == 3:
            P(f's_add_u32 s{AO}, s{AO}, 4096')
        while nb_issued[0] < (7 * (ks + 1) + 3) // 4:
            i = nb_issued[0]
            if i:
                P('s_add_u32 m0, m0, 4096')
            P(f'buffer_load_dwordx4 {v(vl16)}, {s(BS, 4)}, m0 offen lds', tw=[f'B{i}'])
            nb_issued[0] += 1

    LEAD = 16
    for ks in range(LEAD):
        issue(ks)
    P(f's_mov_b32 s{C1}, {fl(GC1)}')
    P(f's_mov_b32 s{C1 + 1}, {fl(GC1)}')
    P(f'v_mov_b32 {v(vc0)}, {fl(GC0)}')
    P(f'v_mov_b32 {v(vc0 + 1)}, {fl(GC0)}')
    P(f'v_add_u32 {v(vb)}, 65536, {v(vl16)}')
    P(f'v_add_u32 {v(vu)}, 131072, {v(vl16)}')
    P(f's_cmp_eq_u32 s{PART}, 0')
    P('s_cbranch_scc1 kw_z1')
    saved = nb_issued[0]

    def reads(ks):
        P.need(*[f'B{i}' for i in range((7 * (ks + 1) + 3) // 4)])
        P('s_barrier')
        for b in range(7):
            off = (ks * 7 + b) * 1024
            base = (vl16, vb, vu)[off >> 16]
            P(f'ds_read_b128 {v(Bf[ks & 1][b], 4)}, {v(base)} offset:{off & 65535}')

    def main(swap):
        nb_issued[0] = saved
        reads(0)
        for ks in range(20):
            if ks + 1 < 20:
                reads(ks + 1)
            if ks + LEAD < 20:
                issue(ks + LEAD)
            if ks == 8:
                code_prefetch(P, PF, vt, PFC, 'ks_kernel', 'ko_kernel', 256, 2)
            for b in range(7):
                for mb in range(2):
                    x, y = a(Af[mb][ks], 4), v(Bf[ks & 1][b], 4)
                    if swap:
                        x, y = y, x
                    mfma(P, v(acc[mb][b], 4), x, y, v(acc[mb][b], 4) if ks else '0')

    main(False)
    P(f's_lshl_b32 s{T0}, s{J}, 6')
    P(f's_add_u32 s{T0}, s{T0}, s{T1}')
    P(f's_mul_i32 s{T0}, s{T0}, 7168')
    P(f's_add_u32 s{T0}, s{T0}, {Z2_OFF}')
    for b in range(7):
        xs = [acc[0][b], acc[0][b] + 2, acc[1][b], acc[1][b] + 2]
        gelu_group(P, xs, tmp, C1, vc0)
        for k, x in enumerate(xs):
            P(f'v_cvt_pk_bf16_f32 {v(pk[b & 1] + k)}, {v(x)}, {v(x + 1)}')
        if b == 4:
            P(f's_add_u32 s{T0}, s{T0}, 4096')
        P(f'buffer_store_dwordx4 {v(pk[b & 1], 4)}, {v(vl16)}, {s(WS, 4)}, s{T0} offen offset:{1024 * (b % 4)}')
        for k, x in enumerate(xs):
            sm, sq = stt + 2 * k, stt + 8 + 2 * k
            if b == 0:
                P(f'v_pk_mul_f32 {v(sq, 2)}, {v(x, 2)}, {v(x, 2)}')
            elif b == 1:
                y = [acc[0][0], acc[0][0] + 2, acc[1][0], acc[1][0] + 2][k]
                P(f'v_pk_add_f32 {v(sm, 2)}, {v(x, 2)}, {v(y, 2)}')
                P(f'v_pk_fma_f32 {v(sq, 2)}, {v(x, 2)}, {v(x, 2)}, {v(sq, 2)}')
            else:
                P(f'v_pk_add_f32 {v(sm, 2)}, {v(x, 2)}, {v(sm, 2)}')
                P(f'v_pk_fma_f32 {v(sq, 2)}, {v(x, 2)}, {v(x, 2)}, {v(sq, 2)}')
    for k in range(8):
        dpp_add(P, stt + k, stt + k, stt + k, 'row_ror:8', bank=0x3)
    for k in range(8):
        dpp_add(P, stt + k, stt + 8 + k, stt + 8 + k, 'row_ror:8', bank=0xc)
    for k in range(4):
        dpp_add(P, stt + k, stt + k, stt + k, 'row_half_mirror', bank=0x5)
    for k in range(4):
        dpp_add(P, stt + k, stt + 4 + k, stt + 4 + k, 'row_half_mirror', bank=0xa)
    for ctl in ('quad_perm:[2,3,0,1]', 'quad_perm:[1,0,3,2]'):
        for k in range(4):
            dpp_add(P, stt + k, stt + k, stt + k, ctl)
    P(f's_mov_b32 s{M1}, 0xaaaaaaaa')
    P(f's_mov_b32 s{M1 + 1}, 0xaaaaaaaa')
    P(f's_mov_b32 s{M2}, 0xcccccccc')
    P(f's_mov_b32 s{M2 + 1}, 0xcccccccc')
    P(f'v_cndmask_b32 {v(stt)}, {v(stt)}, {v(stt + 1)}, {s(M1, 2)}')
    P(f'v_cndmask_b32 {v(stt + 2)}, {v(stt + 2)}, {v(stt + 3)}, {s(M1, 2)}')
    P(f'v_cndmask_b32 {v(stt)}, {v(stt)}, {v(stt + 2)}, {s(M2, 2)}')
    P(f'v_bfe_u32 {v(vt)}, v0, 2, 1')
    P(f'v_bfe_u32 {v(vu)}, v0, 4, 2')
    P(f'v_lshl_add_u32 {v(vt)}, {v(vt)}, 2, {v(vu)}')
    P(f'v_and_b32 {v(vu)}, 3, v0')
    P(f'v_lshl_add_u32 {v(vt)}, {v(vt)}, 2, {v(vu)}')
    P(f'v_bfe_u32 {v(vu)}, v0, 3, 1')
    P(f'v_lshl_add_u32 {v(vt)}, {v(vt)}, 1, {v(vu)}')
    P(f'v_lshlrev_b32 {v(vt)}, 2, {v(vt)}')
    P(f's_lshl_b32 s{T0}, s{T1}, 8')
    P(f's_add_u32 s{T0}, s{T0}, {STAT_OFF}')
    P(f'buffer_atomic_add_f32 {v(stt)}, {v(vt)}, {s(WS, 4)}, s{T0} offen')
    P.label('kw_done')
    P('s_endpgm')

    P.label('kw_z1')
    main(True)
    P(f's_mul_i32 s{T0}, s{T1}, {2 * 112 * 256}')
    P(f's_mul_i32 s{T1}, s{J}, {14 * 256}')
    P(f's_add_u32 s{T0}, s{T0}, s{T1}')
    P(f's_add_u32 s{T0}, s{T0}, {Z1_OFF}')
    P(f'v_bfe_u32 {v(vt)}, v0, 5, 1')
    P(f'v_and_b32 {v(vu)}, 15, v0')
    P(f'v_lshl_add_u32 {v(vt)}, {v(vt)}, 4, {v(vu)}')
    P(f'v_bfe_u32 {v(vu)}, v0, 4, 1')
    P(f'v_lshl_add_u32 {v(vt)}, {v(vt)}, 1, {v(vu)}')
    P(f'v_lshlrev_b32 {v(vt)}, 3, {v(vt)}')
    n = 0
    for tb in range(2):
        for jj in range(3):
            xs = [acc[tb][2 * jj], acc[tb][2 * jj] + 2, acc[tb][2 * jj + 1], acc[tb][2 * jj + 1] + 2]
            gelu_group(P, xs, tmp, C1, vc0)
            for k, x in enumerate(xs):
                P(f'v_cvt_pk_bf16_f32 {v(pk[n & 1] + k)}, {v(x)}, {v(x + 1)}')
            P(f'buffer_store_dwordx4 {v(pk[n & 1], 4)}, {v(vl16)}, {s(WS, 4)}, s{T0} offen offset:{1024 * jj}')
            n += 1
        if tb == 0:
            P(f's_add_u32 s{T0}, s{T0}, {112 * 256}')
    xs = [acc[0][6], acc[0][6] + 2, acc[1][6], acc[1][6] + 2]
    gelu_group(P, xs, tmp, C1, vc0)
    for k, x in enumerate(xs):
        P(f'v_cvt_pk_bf16_f32 {v(pk[0] + k)}, {v(x)}, {v(x + 1)}')
    P(f'buffer_store_dwordx2 {v(pk[0] + 2, 2)}, {v(vt)}, {s(WS, 4)}, s{T0} offen offset:3072')
    P(f's_sub_u32 s{T0}, s{T0}, {112 * 256}')
    P(f'buffer_store_dwordx2 {v(pk[0], 2)}, {v(vt)}, {s(WS, 4)}, s{T0} offen offset:3072')
    P('s_endpgm')
    return P


KS_WAVE = 36864
KS_LDS = 4 * KS_WAVE


def gen_ks():
    P = Prog('ks_kernel')
    WS, SP, ZS, BP, PF = 4, 8, 12, 16, 20
    W, MT, J, T0, T1, ZO, LB, MK = 24, 25, 26, 27, 28, 29, 30, 32
    AO = 34
    P('s_cmp_ge_u32 s2, 256')
    P('s_cbranch_scc1 ks_done')
    srd(P, WS, KA_WS, WS_END)
    srd(P, SP, KA_WSP, S * 4096)
    srd(P, BP, KA_BSP, 4096)
    A = Alloc(1, 256)
    vl, vl16, vt, vu, vh, vg = [A.get() for _ in range(6)]
    vsrc = [A.get() for _ in range(2)]
    var = [[A.get() for c in range(4)] for _ in range(1)][0]
    vrt, vmt = A.get(), A.get()
    acc = [[A.get(4) for b in range(7)] for sl in range(4)]
    NB = 6
    B6 = [A.get(4) for _ in range(NB)]
    RA = [[A.get(4) for sl in range(4)] for _ in range(3)]
    RR = [A.get(8) for _ in range(2)]
    MU = [A.get(4) for _ in range(2)]
    tmp = A.get(8)
    vbs = A.get()
    PFC = A.get(1)
    Bf = [[(k * 6 + b) * 4 for b in range(6)] for k in range(NB)]
    Z1 = [NB * 24 + 4 * i for i in range(4)]

    def bf(k, b):
        return v(B6[k % NB], 4) if b == 6 else a(Bf[k % NB][b], 4)

    P(f'v_readfirstlane_b32 s{W}, v0')
    P(f'v_and_b32 {v(vl)}, 63, v0')
    P(f'v_lshlrev_b32 {v(vl16)}, 4, {v(vl)}')
    P(f's_and_b32 s{T0}, s2, 3')
    P(f's_bfe_u32 s{T1}, s2, 0x30003')
    P(f's_lshl3_add_u32 s{MT}, s{T0}, s{T1}')
    P(f's_bfe_u32 s{T0}, s2, 0x10002')
    P(f's_lshr_b32 s{T1}, s2, 6')
    P(f's_lshl2_add_u32 s{J}, s{T0}, s{T1}')
    P(f's_lshr_b32 s{W}, s{W}, 6')
    ST = RA[1][0]
    assert RA[1][3] == ST + 12
    P(f'v_lshlrev_b32 {v(vt)}, 6, {v(vl)}')
    P(f's_lshl_b32 s{T0}, s{W}, 12')
    P(f's_add_u32 s{T0}, s{T0}, {STAT_OFF}')
    for k in range(4):
        P(f'buffer_load_dwordx4 {v(ST + 4 * k, 4)}, {v(vt)}, {s(WS, 4)}, s{T0} offen offset:{16 * k}')
    P(f'v_lshrrev_b32 {v(vt)}, 3, {v(vl)}')
    P(f'v_lshrrev_b32 {v(vu)}, 4, {v(vl)}')
    P(f'v_and_b32 {v(vh)}, 7, v0')
    P(f'v_xor_b32 {v(vh)}, {v(vh)}, {v(vu)}')
    P(f'v_lshlrev_b32 {v(vt)}, 12, {v(vt)}')
    P(f'v_lshl_add_u32 {v(vsrc[0])}, {v(vh)}, 4, {v(vt)}')
    P(f'v_xor_b32 {v(vsrc[1])}, 64, {v(vsrc[0])}')
    P(f's_lshl_b32 s{AO}, s{MT}, 18')
    P(f's_lshl_b32 s{T0}, s{W}, 10')
    P(f's_add_u32 s{AO}, s{AO}, s{T0}')
    P(f's_mul_i32 s{LB}, s{W}, {KS_WAVE}')
    P(f's_lshl_b32 s{T0}, s{J}, 6')
    P(f's_lshl4_add_u32 s{T0}, s{W}, s{T0}')
    P(f's_mul_i32 s{T0}, s{T0}, 7168')
    P(f's_add_u32 s{T0}, s{T0}, {Z2_OFF}')
    P(f's_add_u32 s{ZS}, s{WS}, s{T0}')
    P(f's_addc_u32 s{ZS + 1}, s{WS + 1}, 0')
    P(f's_mov_b32 s{ZS + 2}, {16 * 7168}')
    P(f's_mov_b32 s{ZS + 3}, 0x20000')

    def issueA(st, half):
        for i in range(4 * half, 4 * half + 4):
            P(f's_add_u32 m0, s{LB}, {(st % 4) * 8192 + i * 1024}')
            P(f's_add_u32 s{T0}, s{AO}, {st * 128 + i * 32768}')
            P(f'buffer_load_dwordx4 {v(vsrc[i & 1])}, {s(SP, 4)}, s{T0} offen lds', tw=[f'A{st}'])

    def issueB(k):
        for b in range(7):
            off = (k * 7 + b) * 1024
            if off % 4096 == 0 or b == 0:
                P(f's_mov_b32 s{ZO}, {off & ~4095}')
            P(f'buffer_load_dwordx4 {bf(k, b)}, {v(vl16)}, {s(ZS, 4)}, s{ZO} offen offset:{off & 4095}')

    issueA(0, 0); issueA(0, 1); issueB(0); issueB(1)
    issueA(1, 0); issueA(1, 1); issueB(2); issueB(3)
    issueA(2, 0); issueA(2, 1)
    P(f'v_and_b32 {v(vh)}, 15, v0')
    P(f'v_bfe_u32 {v(vg)}, v0, 4, 2')
    P(f'v_bfe_u32 {v(vt)}, v0, 1, 3')
    P(f'v_lshrrev_b32 {v(vu)}, 1, {v(vg)}')
    P(f'v_xor_b32 {v(vt)}, {v(vt)}, {v(vu)}')
    P(f'v_lshlrev_b32 {v(vt)}, 4, {v(vt)}')
    P(f'v_lshl_add_u32 {v(vt)}, {v(vh)}, 7, {v(vt)}')
    P(f'v_and_b32 {v(vu)}, 1, {v(vg)}')
    P(f'v_lshl_add_u32 {v(vt)}, {v(vu)}, 3, {v(vt)}')
    P(f'v_add_u32 {v(var[0])}, s{LB}, {v(vt)}')
    for c in range(1, 4):
        P(f'v_xor_b32 {v(var[c])}, {32 * c}, {v(var[0])}')
    for k in range(8):
        P(f'v_mul_f32 {v(ST + 2 * k)}, {fl(1.0 / FH)}, {v(ST + 2 * k)}')
        P(f'v_mul_f32 {v(ST + 2 * k + 1)}, {fl(1.0 / FH)}, {v(ST + 2 * k + 1)}')
    R8 = RR[0]
    for k in range(8):
        P(f'v_fma_f32 {v(R8 + k)}, -{v(ST + 2 * k)}, {v(ST + 2 * k)}, {v(ST + 2 * k + 1)}')
    for k in range(8):
        P(f'v_max_f32 {v(R8 + k)}, 0, {v(R8 + k)}')
    for k in range(8):
        P(f'v_add_f32 {v(R8 + k)}, {fl(1e-5)}, {v(R8 + k)}')
    for k in range(8):
        P(f'v_rsq_f32 {v(R8 + k)}, {v(R8 + k)}')
    HI, LO = MU[0], MU[1]
    for k in range(4):
        P(f'v_cvt_pk_bf16_f32 {v(HI + k)}, {v(ST + 4 * k)}, {v(ST + 4 * k + 2)}')
    for k in range(4):
        unpack(P, tmp, tmp + 1, HI + k)
        P(f'v_sub_f32 {v(tmp)}, {v(ST + 4 * k)}, {v(tmp)}')
        P(f'v_sub_f32 {v(tmp + 1)}, {v(ST + 4 * k + 2)}, {v(tmp + 1)}')
        P(f'v_cvt_pk_bf16_f32 {v(LO + k)}, {v(tmp)}, {v(tmp + 1)}')
    P(f's_add_u32 s{T1}, s{LB}, 32768')
    P(f'v_lshl_add_u32 {v(vt)}, {v(vl)}, 5, s{T1}')
    P(f'ds_write_b128 {v(vt)}, {v(R8, 4)}')
    P(f'ds_write_b128 {v(vt)}, {v(R8 + 4, 4)} offset:16')
    P(f'v_lshrrev_b32 {v(vt)}, 2, {v(vl)}')
    P(f'v_lshlrev_b32 {v(vt)}, 7, {v(vt)}')
    P(f'v_and_b32 {v(vu)}, 1, v0')
    P(f'v_lshl_add_u32 {v(vt)}, {v(vu)}, 5, {v(vt)}')
    P(f'v_bfe_u32 {v(vu)}, v0, 1, 1')
    P(f'v_lshl_add_u32 {v(vt)}, {v(vu)}, 3, {v(vt)}')
    P(f'v_add_u32 {v(vt)}, s{T1}, {v(vt)}')
    P(f'ds_write_b64 {v(vt)}, {v(HI, 2)} offset:2048')
    P(f'ds_write_b64 {v(vt)}, {v(HI + 2, 2)} offset:{2048 + 16}')
    P(f'ds_write_b64 {v(vt)}, {v(LO, 2)} offset:{2048 + 64}')
    P(f'ds_write_b64 {v(vt)}, {v(LO + 2, 2)} offset:{2048 + 80}')
    P(f'v_lshl_add_u32 {v(vrt)}, {v(vg)}, 4, s{T1}')
    P(f'v_cmp_eq_u32 vcc, 13, {v(vh)}')
    P(f'v_add_u32 {v(vt)}, 64, {v(vrt)}')
    P(f'v_cndmask_b32 {v(vmt)}, {v(vrt)}, {v(vt)}, vcc')
    P(f's_mov_b32 s{MK}, 0x30003000')
    P(f's_mov_b32 s{MK + 1}, 0x30003000')
    SLO = [36, 37, 38, 39]
    vsl = [[None] * 4 for _ in range(4)]
    for sl in range(4):
        P(f's_add_u32 s{T0}, s{W}, {sl}')
        P(f's_and_b32 s{T0}, s{T0}, 3')
        P(f's_lshl_b32 s{SLO[sl]}, s{T0}, 11')
        for c in range(4):
            vsl[sl][c] = A.get()
            P(f'v_add_u32 {v(vsl[sl][c])}, s{SLO[sl]}, {v(var[c])}')

    def readA(k):
        st, h = k >> 1, k & 1
        if h == 0:
            P.need(f'A{st}')
        for sl in range(4):
            for e in range(2):
                P(f'ds_read_b64 {v(RA[k % 3][sl] + 2 * e, 2)}, {v(vsl[sl][2 * h + e])} offset:{(st % 4) * 8192}')
        P(f'ds_read_b128 {v(RR[k & 1], 4)}, {v(vrt)} offset:{128 * k}')
        P(f'ds_read_b128 {v(RR[k & 1] + 4, 4)}, {v(vrt)} offset:{128 * k + 64}')
        P(f'ds_read_b128 {v(MU[k & 1], 4)}, {v(vmt)} offset:{2048 + 128 * k}')

    def scale_ops(k):
        ops = []
        for sl in range(4):
            for dd in range(4):
                x = RA[k % 3][sl] + dd
                t = tmp + 2 * (dd & 3)
                r = RR[k & 1] + 2 * dd
                ops.append([f'v_lshlrev_b32 {v(t)}, 16, {v(x)}', f'v_and_b32 {v(t + 1)}, 0xffff0000, {v(x)}',
                            f'v_mul_f32 {v(t)}, {v(t)}, {v(r)}', f'v_mul_f32 {v(t + 1)}, {v(t + 1)}, {v(r + 1)}',
                            f'v_cvt_pk_bf16_f32 {v(x)}, {v(t)}, {v(t + 1)}'])
        out = []
        for g0 in range(0, 16, 4):
            grp = ops[g0:g0 + 4]
            for stage in (0, 1, 2, 3, 4):
                for o in grp:
                    out.append(o[stage])
        for dd in range(4):
            x = B6[k % NB] + dd
            out.append(f'v_cndmask_b32 {v(x)}, {v(x)}, {v(MU[k & 1] + dd)}, {s(MK, 2)}')
        return out

    readA(0)
    readA(1)
    for o in scale_ops(0):
        P(o)
    for k in range(16):
        if k + 2 < 16:
            readA(k + 2)
        if k + 4 < 16:
            issueB(k + 4)
        if (k >> 1) + 3 < 8:
            issueA((k >> 1) + 3, k & 1)
        if k == 12:
            P(f's_lshl2_add_u32 s{T0}, s{MT}, s{W}')
            P(f's_lshl_b32 s{T1}, s{T0}, 5')
            P(f'v_lshlrev_b32 {v(vt)}, 1, {v(vh)}')
            P(f'buffer_load_ushort {v(vbs)}, {v(vt)}, {s(BP, 4)}, s{T1} offen')
            P(f's_mul_i32 s{T0}, s{T0}, {112 * 256}')
            P(f's_mul_i32 s{T1}, s{J}, {14 * 256}')
            P(f's_add_u32 s{AO}, s{T0}, s{T1}')
            P(f's_add_u32 s{T0}, s{AO}, {Z1_OFF}')
            P(f'v_lshrrev_b32 {v(vt)}, 1, {v(vg)}')
            P(f'v_lshl_add_u32 {v(vt)}, {v(vt)}, 4, {v(vh)}')
            P(f'v_and_b32 {v(vu)}, 1, {v(vg)}')
            P(f'v_lshl_add_u32 {v(vt)}, {v(vt)}, 1, {v(vu)}')
            P(f'v_lshlrev_b32 {v(vsrc[0])}, 3, {v(vt)}')
            for jj in range(3):
                P(f'buffer_load_dwordx4 {a(Z1[jj], 4)}, {v(vl16)}, {s(WS, 4)}, s{T0} offen offset:{1024 * jj}')
            P(f'buffer_load_dwordx2 {a(Z1[3], 2)}, {v(vsrc[0])}, {s(WS, 4)}, s{T0} offen offset:3072')
            code_prefetch(P, PF, vt, PFC, 'ko_kernel', 'ctab', 256, 1)
        ops = scale_ops(k + 1) if k + 1 < 16 else []
        n = 0
        for b in range(7):
            for sl in range(4):
                mfma(P, v(acc[sl][b], 4), bf(k, b), v(RA[k % 3][sl], 4), v(acc[sl][b], 4) if k else '0')
                for o in ops[n:n + 3]:
                    P(o)
                n += 3
    P(f'v_add_u32 {v(vt)}, s{LB}, {v(vl16)}')
    for sl in range(1, 4):
        for b in range(7):
            P(f'ds_write_b128 {v(vt)}, {v(acc[sl][b], 4)} offset:{((sl - 1) * 7 + b) * 1024}', tw=['red'])
    vrd = [vsl[0][c] for c in range(3)]
    for sl in range(1, 4):
        P(f's_sub_u32 s{T0}, s{W}, {sl}')
        P(f's_and_b32 s{T0}, s{T0}, 3')
        P(f's_mul_i32 s{T0}, s{T0}, {KS_WAVE}')
        P(f'v_add_u32 {v(vrd[sl - 1])}, s{T0}, {v(vl16)}')
    ZR = RA[0][0]
    for k in range(14):
        P(f'v_accvgpr_read_b32 {v(ZR + k)}, {a(Z1[0] + k)}')
    P(f'v_lshlrev_b32 {v(vbs)}, 16, {v(vbs)}')
    P(f'v_add_u32 {v(vu)}, 48, {v(vh)}')
    P(f'v_lshlrev_b32 {v(vu)}, 2, {v(vu)}')
    P(f's_add_u32 s{AO}, s{AO}, {U_OFF}')
    P.need('red')
    P('s_barrier')
    order = [6, 0, 1, 2, 3, 4, 5]
    for b in order:
        for sl in range(1, 4):
            P(f'ds_read_b128 {v(acc[sl][b], 4)}, {v(vrd[sl - 1])} offset:{((sl - 1) * 7 + b) * 1024}')
    for b in order:
        for h in range(2):
            P(f'v_pk_add_f32 {v(acc[0][b] + 2 * h, 2)}, {v(acc[0][b] + 2 * h, 2)}, {v(acc[1][b] + 2 * h, 2)}')
            P(f'v_pk_add_f32 {v(acc[2][b] + 2 * h, 2)}, {v(acc[2][b] + 2 * h, 2)}, {v(acc[3][b] + 2 * h, 2)}')
        for h in range(2):
            P(f'v_pk_add_f32 {v(acc[0][b] + 2 * h, 2)}, {v(acc[0][b] + 2 * h, 2)}, {v(acc[2][b] + 2 * h, 2)}')
        if b == 6:
            P(f'v_add_f32 {v(vt)}, {v(acc[0][6])}, {v(acc[0][6] + 1)}')
            P(f'ds_bpermute_b32 {v(vt)}, {v(vu)}, {v(vt)}')
    C0 = tmp + 6
    P(f'v_sub_f32 {v(C0)}, {v(vbs)}, {v(vt)}')
    OUT = RA[1][0]
    for jj in range(4):
        blocks = [2 * jj, 2 * jj + 1] if jj < 3 else [6]
        for n, b in enumerate(blocks):
            for h in range(2):
                x = acc[0][b] + 2 * h
                z = ZR + 4 * jj + 2 * n + h
                t = tmp + 2 * h
                unpack(P, t, t + 1, z)
                P(f'v_pk_add_f32 {v(x, 2)}, {v(x, 2)}, {v(C0, 2)} op_sel_hi:[1,0]')
                P(f'v_pk_mul_f32 {v(x, 2)}, {v(x, 2)}, {v(t, 2)}')
                P(f'v_cvt_pk_bf16_f32 {v(OUT + 4 * jj + 2 * n + h)}, {v(x)}, {v(x + 1)}')
        if jj < 3:
            P(f'buffer_store_dwordx4 {v(OUT + 4 * jj, 4)}, {v(vl16)}, {s(WS, 4)}, s{AO} offen offset:{1024 * jj}')
        else:
            P(f'buffer_store_dwordx2 {v(OUT + 12, 2)}, {v(vsrc[0])}, {s(WS, 4)}, s{AO} offen offset:3072')
    P.label('ks_done')
    P('s_endpgm')
    return P


KO_RS = 336
KO_LDS = 4 * 64 * KO_RS


def gen_ko():
    P = Prog('ko_kernel')
    WS, OS = 4, 8
    W, MT, J, T0, T1, UO, WO = 16, 17, 18, 19, 20, 21, 22
    P('s_cmp_ge_u32 s2, 256')
    P('s_cbranch_scc1 ko_done')
    srd(P, WS, KA_WS, WS_END)
    srd(P, OS, KA_OUT, S * 1280)
    A = Alloc(1, 256)
    vl16, vt, vu, vw, vr, vo, vo5 = [A.get() for _ in range(7)]
    vblk = [vl16] + [A.get() for _ in range(3)]
    acc = [[A.get(4) for nb in range(5)] for tb in range(4)]
    GB = A.get(4)
    X1 = [A.get(2) for _ in range(6)]
    RD = [[A.get(4) for p in range(4)] for _ in range(6)]
    tmp = A.get(4)
    Uf = [[(ks * 9 + tb) * 4 for tb in range(4)] for ks in range(7)]
    Wf = [[(ks * 9 + 4 + nb) * 4 for nb in range(5)] for ks in range(7)]
    P(f'v_readfirstlane_b32 s{W}, v0')
    P(f'v_and_b32 {v(vt)}, 63, v0')
    P(f'v_lshlrev_b32 {v(vl16)}, 4, {v(vt)}')
    for tb in range(1, 4):
        P(f'v_add_u32 {v(vblk[tb])}, {tb * 112 * 256}, {v(vl16)}')
    P(f's_and_b32 s{T0}, s2, 3')
    P(f's_bfe_u32 s{T1}, s2, 0x30003')
    P(f's_lshl3_add_u32 s{MT}, s{T0}, s{T1}')
    P(f's_bfe_u32 s{T0}, s2, 0x10002')
    P(f's_lshr_b32 s{T1}, s2, 6')
    P(f's_lshl2_add_u32 s{J}, s{T0}, s{T1}')
    P(f's_lshr_b32 s{W}, s{W}, 6')
    P(f's_mul_i32 s{UO}, s{MT}, {4 * 112 * 256}')
    P(f's_mul_i32 s{T0}, s{W}, 7168')
    P(f's_add_u32 s{UO}, s{UO}, s{T0}')
    P(f's_add_u32 s{UO}, s{UO}, {U_OFF}')
    P(f's_mul_i32 s{WO}, s{J}, {28 * 5120}')
    P(f's_mul_i32 s{T0}, s{W}, {7 * 5120}')
    P(f's_add_u32 s{WO}, s{WO}, s{T0}')
    P(f's_add_u32 s{WO}, s{WO}, {WOUT_OFF}')
    for ks in range(7):
        if ks == 4:
            P(f's_add_u32 s{UO}, s{UO}, 4096')
        for tb in range(4):
            P(f'buffer_load_dwordx4 {a(Uf[ks][tb], 4)}, {v(vblk[tb])}, {s(WS, 4)}, s{UO} offen offset:{1024 * (ks % 4)}')
        for nb in range(5):
            off = (ks * 5 + nb) * 1024
            if off and off % 4096 == 0:
                P(f's_add_u32 s{WO}, s{WO}, 4096')
            P(f'buffer_load_dwordx4 {a(Wf[ks][nb], 4)}, {v(vl16)}, {s(WS, 4)}, s{WO} offen offset:{off % 4096}')
    assert all((t * 3277) >> 16 == t // 20 for t in range(256))
    P(f'v_mul_u32_u24 {v(vt)}, 3277, v0')
    P(f'v_lshrrev_b32 {v(vt)}, 16, {v(vt)}')
    P(f'v_mul_u32_u24 {v(vu)}, 20, {v(vt)}')
    P(f'v_sub_u32 {v(vu)}, v0, {v(vu)}')
    P(f'v_mul_u32_u24 {v(vr)}, {KO_RS}, {v(vt)}')
    P(f'v_lshl_add_u32 {v(vr)}, {v(vu)}, 4, {v(vr)}')
    P(f'v_mul_u32_u24 {v(vo)}, 1280, {v(vt)}')
    P(f'v_lshl_add_u32 {v(vo)}, {v(vu)}, 3, {v(vo)}')
    P(f'v_lshlrev_b32 {v(vu)}, 4, {v(vu)}')
    P(f'v_mov_b32 {v(vt)}, {OOB:#x}')
    P(f'v_cmp_gt_u32 vcc, 80, v0')
    P(f'v_cndmask_b32 {v(vo5)}, {v(vt)}, {v(vo)}, vcc')
    P(f'v_cmp_gt_u32 vcc, 240, v0')
    P(f'v_cndmask_b32 {v(vo)}, {v(vt)}, {v(vo)}, vcc')
    P(f'v_and_b32 {v(vw)}, 15, v0')
    P(f'v_mul_u32_u24 {v(vw)}, {KO_RS}, {v(vw)}')
    P(f'v_bfe_u32 {v(vt)}, v0, 4, 2')
    P(f'v_lshl_add_u32 {v(vw)}, {v(vt)}, 4, {v(vw)}')
    P(f's_mul_i32 s{T0}, s{W}, {64 * KO_RS}')
    P(f'v_add_u32 {v(vw)}, s{T0}, {v(vw)}')
    P(f's_mul_i32 s{UO}, s{MT}, {64 * 1280}')
    P(f's_mul_i32 s{T0}, s{J}, 160')
    P(f's_add_u32 s{UO}, s{UO}, s{T0}')
    P(f's_lshl_b32 s{T0}, s{T0}, 1')
    P(f's_add_u32 s{T0}, s{T0}, {MOD_OFF + 5 * 2560}')
    P(f's_add_u32 s{WO}, s{UO}, {X1_OFF}')
    for ks in range(7):
        for nb in range(5):
            for tb in range(4):
                mfma(P, v(acc[tb][nb], 4), a(Wf[ks][nb], 4), a(Uf[ks][tb], 4), v(acc[tb][nb], 4) if ks else '0')
        if ks == 0:
            P(f'buffer_load_dwordx4 {v(GB, 4)}, {v(vu)}, {s(WS, 4)}, s{T0} offen')
            for r in range(6):
                P(f'buffer_load_dwordx2 {v(X1[r], 2)}, {v(vo if r < 5 else vo5)}, {s(WS, 4)}, s{WO} offen')
                if r < 5:
                    P(f's_add_u32 s{WO}, s{WO}, {12 * 1280}')
    for tb in range(4):
        for nb in range(5):
            P(f'ds_write_b128 {v(vw)}, {v(acc[tb][nb], 4)} offset:{tb * 16 * KO_RS + 64 * nb}', tw=['red'])
    P(f'v_add_u32 {v(vt)}, {2 * 64 * KO_RS}, {v(vr)}')
    P.need('red')
    P('s_barrier')
    for r in range(6):
        for p in range(4):
            P(f'ds_read_b128 {v(RD[r][p], 4)}, {v(vr if p < 2 else vt)} offset:{(p & 1) * 64 * KO_RS + r * 12 * KO_RS}')
    for r in range(6):
        d = RD[r]
        for h in range(2):
            P(f'v_pk_add_f32 {v(d[0] + 2 * h, 2)}, {v(d[0] + 2 * h, 2)}, {v(d[1] + 2 * h, 2)}')
            P(f'v_pk_add_f32 {v(d[2] + 2 * h, 2)}, {v(d[2] + 2 * h, 2)}, {v(d[3] + 2 * h, 2)}')
        for h in range(2):
            unpack(P, tmp + 2 * h, tmp + 2 * h + 1, X1[r] + h)
        for h in range(2):
            P(f'v_pk_add_f32 {v(d[0] + 2 * h, 2)}, {v(d[0] + 2 * h, 2)}, {v(d[2] + 2 * h, 2)}')
        for h in range(2):
            P(f'v_pk_fma_f32 {v(d[0] + 2 * h, 2)}, {v(d[0] + 2 * h, 2)}, {v(GB + 2 * h, 2)}, {v(tmp + 2 * h, 2)}')
        for h in range(2):
            P(f'v_cvt_pk_bf16_f32 {v(X1[r] + h)}, {v(d[0] + 2 * h)}, {v(d[0] + 2 * h + 1)}')
        P(f'buffer_store_dwordx2 {v(X1[r], 2)}, {v(vo if r < 5 else vo5)}, {s(OS, 4)}, s{UO} offen')
        if r < 5:
            P(f's_add_u32 s{UO}, s{UO}, {12 * 1280}')
    P.label('ko_done')
    P('s_endpgm')
    return P


def build(path):
    ks = [(gen_ka(), KA_END, 512, KA_LDS), (gen_kb(), 256, 512, KB_LDS), (gen_kw(), 256, 256, KW_LDS),
          (gen_ks(), 256, 256, KS_LDS), (gen_ko(), 256, 256, KO_LDS)]
    out = HEADER
    for P, g, b, l in ks:
        out += f'; @launch kernel={P.name} grid=({g},1,1) block=({b},1,1) lds={l}\n'
    out += '.amdgcn_target "amdgcn-amd-amdhsa--gfx950"\n.text\n'
    for P, g, b, l in ks:
        P.finish()
        out += P.text()
        print(P.name, 'instrs', len(P.items), 'regs', P.maxregs(), file=sys.stderr)
    out += '.p2align 8\n.type ctab,@object\nctab:\n'
    t = tables()
    for i in range(0, len(t), 8):
        out += '.long ' + ','.join('0x%x' % x for x in t[i:i + 8]) + '\n'
    out += f'.size ctab, {CT_SIZE}\ncode_end:\n'
    out += '.section .rodata,"a"\n'
    for P, g, b, l in ks:
        out += P.descriptor()
    open(path, 'w').write(out)


if __name__ == '__main__':
    build(sys.argv[1] if len(sys.argv) > 1 else 'cdna_kernels/' + NAME + '.s')
```

```python
import re
from asmlib import *
NAME='adaLN_cond__spectral_fnet__mixer_gmlp__prompt'
base = open('cdna_kernels/'+NAME+'.s').read()
def add(extra_prog, front, fn):
    P = extra_prog
    line = f'; @launch kernel={P.name} grid=(256,1,1) block=(256,1,1) lds=0\n'
    i0 = base.index('; @launch'); i1 = base.index('.amdgcn_target')
    s = base[:i0] + (line + base[i0:i1] if front else base[i0:i1] + line) + base[i1:]
    s = s.replace('.text\n', '.text\n' + P.text(), 1) + P.descriptor()
    open('cdna_kernels/' + fn, 'w').write(s)
def empty():
    P = Prog('xe_kernel'); P('v_mov_b32 v1, 0\ns_endpgm'); return P
def reader():
    P = Prog('xr_kernel')
    P('s_cmp_ge_u32 s2, 256\ns_cbranch_scc1 xr_done')
    for R, off in ((4, 8), (8, 16)):
        P(f's_load_dwordx2 s[{R}:{R+1}], s[0:1], {off}\ns_mov_b32 s{R+2}, {2048*4096}\ns_mov_b32 s{R+3}, 0x20000')
    P('v_lshlrev_b32 v1, 4, v0\ns_lshl_b32 s12, s2, 15')
    for i in range(8):
        P(f'buffer_load_dwordx4 v[{4+8*i}:{7+8*i}], v1, s[4:7], s12 offen')
        P(f'buffer_load_dwordx4 v[{8+8*i}:{11+8*i}], v1, s[8:11], s12 offen')
        P('s_add_u32 s12, s12, 4096')
    P('s_waitcnt vmcnt(0)')
    P.label('xr_done'); P('s_endpgm'); P.finish(); return P
def code():
    P = Prog('xc_kernel')
    for i in range(2048): P('v_add3_u32 v1, v2, v3, v4')
    P('s_endpgm'); return P
add(empty(), False, 'var1.s'); add(reader(), True, 'var2.s'); add(code(), True, 'var3.s'); add(empty(), True, 'var4.s')
```

```python
from variants import *
def addn(n, front, fn):
    P = empty()
    line = f'; @launch kernel={P.name} grid=(256,1,1) block=(256,1,1) lds=0\n' * n
    i0 = base.index('; @launch'); i1 = base.index('.amdgcn_target')
    s = base[:i0] + (line + base[i0:i1] if front else base[i0:i1] + line) + base[i1:]
    s = s.replace('.text\n', '.text\n' + P.text(), 1) + P.descriptor()
    open('cdna_kernels/' + fn, 'w').write(s)
addn(10, True, 'var5.s'); addn(30, True, 'var6.s'); addn(30, False, 'var7.s')
```

```python
import math
import struct

S, D, FH = 2048, 640, 864
T_ROW = 1312
T_BLK = 64 * T_ROW


def al(x, a=4096):
    return (x + a - 1) // a * a


T_OFF = 0
MOD_OFF = al(T_OFF + 32 * T_BLK)
GRAN_OFF = al(MOD_OFF + 15360)
FL1_OFF = GRAN_OFF + 2048 * 128
FL2_OFF = FL1_OFF + 32768
WIN_OFF = al(FL2_OFF + 32768)
WOUT_OFF = al(WIN_OFF + 16 * 143360)
H2_OFF = al(WOUT_OFF + 8 * 28 * 5 * 1024)
X1_OFF = al(H2_OFF + 128 * 20 * 1024)
Z1_OFF = al(X1_OFF + 2048 * 1280)
Z2_OFF = al(Z1_OFF + 128 * 112 * 256)
U_OFF = al(Z2_OFF + 8 * 64 * 7 * 1024)
U_HALF = 128 * 112 * 256
WS_END = al(U_OFF + 2 * U_HALF)

KA_X, KA_WIN, KA_WSP, KA_BSP, KA_WOUT, KA_C, KA_WMOD, KA_OUT, KA_DBG, KA_WS = 0, 48, 56, 64, 72, 80, 88, 96, 104, 112


def bf16_bits(x):
    u = struct.unpack('<I', struct.pack('<f', x))[0]
    return ((u + 0x7FFF + ((u >> 16) & 1)) >> 16) & 0xFFFF


def cosr(num, den):
    num %= den
    if 4 * num == den or 4 * num == 3 * den:
        return 0.0
    return math.cos(2 * math.pi * num / den)


def frag(fn):
    out = []
    for l in range(64):
        vals = [bf16_bits(fn(l & 15, l >> 4, q)) for q in range(8)]
        out += [vals[2 * k] | (vals[2 * k + 1] << 16) for k in range(4)]
    return out


def f32w(x):
    return struct.unpack('<I', struct.pack('<f', x))[0]


def tables():
    t = []
    for mb in range(3):
        for cp in range(2):
            def fn(m, g, q):
                e2, cpp = 8 * mb + (m >> 1), m & 1
                d2 = 16 * (q >> 2) + 4 * g + (q & 3)
                if e2 >= 20 or d2 >= 20:
                    return 0.0
                return cosr(e2 * d2 + 5 * (cpp - cp), 20)
            t += frag(fn)
    for nb in range(2):
        for ks in range(2):
            def fn(n, g, q):
                e1 = 16 * nb + n
                d1 = 16 * ks + 4 * g + (q >> 1)
                return cosr(e1 * d1 - 8 * (q & 1), 32)
            t += frag(fn)
    for mb in range(3):
        for nb in range(2):
            for l in range(64):
                d1 = 16 * nb + (l & 15)
                for p in range(2):
                    e2 = 8 * mb + 2 * (l >> 4) + p
                    t += [f32w(cosr(e2 * d1, 640)), f32w(cosr(e2 * d1 - 160, 640))]
    for nb in range(4):
        for ks in range(2):
            def fn(n, g, q):
                o = 16 * nb + n
                t2, c = o & 31, o >> 5
                if o == 32:
                    t2, c = 32, 0
                s2 = 32 * ks + 16 * (q >> 2) + 4 * g + (q & 3)
                return cosr(t2 * s2 + 16 * c, 64)
            t += frag(fn)
    return t


CT_CA, CT_CB, CT_TW, CT_FA, CT_SIZE = 0, 6144, 10240, 16384, 24576


def blockcol(b, n):
    return 8 * (n >> 2) + 4 * b + (n & 3) if b < 2 else 32 + n if b == 2 else 48 + (n & 7)


def piece_col(fp):
    if fp < 32:
        return 0, fp
    if fp < 64:
        return 1, fp - 32
    if fp < 96:
        return (fp >> 2) & 1, 32 + 4 * ((fp - 64) >> 3) + (fp & 3)
    if fp < 104:
        return 0, fp - 48
    return 1, fp - 56


Z2_SLOT = [[0, 1, 4, 6], [2, 3, 5, 6]]
```

```python
import sys
from asmlib import *
from layout import *

OOB = 0x80000000
NAME = 'adaLN_cond__spectral_fnet__mixer_gmlp__prompt'
HEADER = open('cdna_kernels/' + NAME + '.s.ref').read().split('; Override launch')[0]
LOG2E = 1.4426950408889634


def srd(P, R, kaoff, size):
    P(f's_load_dwordx2 {s(R, 2)}, s[0:1], {kaoff}')
    P(f's_mov_b32 {s(R + 2)}, {size}')
    P(f's_mov_b32 {s(R + 3)}, 0x20000')


def pcsrd(P, R, sym, size):
    lab = P.newlabel('pc')
    P(f's_getpc_b64 {s(R, 2)}')
    P.label(lab)
    P(f's_add_u32 {s(R)}, {s(R)}, {sym}-{lab}')
    P(f's_addc_u32 {s(R + 1)}, {s(R + 1)}, 0')
    P(f's_mov_b32 {s(R + 2)}, {size}')
    P(f's_mov_b32 {s(R + 3)}, 0x20000')


def code_prefetch(P, R, vtmp, vdst, first, last, nthreads, nloads, guard=True):
    skip = P.newlabel('nopf')
    if guard:
        P('s_cmp_ge_u32 s2, 8')
        P(f's_cbranch_scc1 {skip}')
    pcsrd(P, R, first, f'{last}-{first}')
    P(f'v_lshlrev_b32 {v(vtmp)}, 6, v0')
    for i in range(nloads):
        if i:
            P(f'v_add_u32 {v(vtmp)}, {nthreads * 64}, {v(vtmp)}')
        P(f'buffer_load_dword {v(vdst + i)}, {v(vtmp)}, {s(R, 4)}, 0 offen')
    P.label(skip)


PROF = False
RT = 0
WT = ' sc1'
PROF_OFF = WS_END
PROF_KID = {'ka_kernel': 0, 'kb_kernel': 1, 'kg_kernel': 2}
SB = 44


def stamp(P, i):
    if PROF:
        P(f'{"s_memrealtime" if RT else "s_memtime"} {s(SB + 4 + 2 * i, 2)}')
        if i == 0:
            P(f's_memrealtime {s(SB, 2)}')


def endpgm(P, n=0, ws=4):
    if PROF and n:
        P('s_waitcnt vmcnt(0)')
        stamp(P, n)
        P(f's_memrealtime {s(SB + 2, 2)}')
        P('s_waitcnt lgkmcnt(0)')
        P(f's_mov_b32 s{ws + 2}, {PROF_OFF + (5 << 20)}')
        P('v_lshrrev_b32 v1, 6, v0')
        P(f's_lshl_b32 s{SB + 1}, s2, 3')
        P(f'v_add_u32 v1, s{SB + 1}, v1')
        P('v_lshlrev_b32 v1, 7, v1')
        P(f's_mov_b32 s{SB + 1}, {PROF_OFF + (PROF_KID[P.name] << 20)}')
        P('s_mov_b64 exec, 1')
        P(f's_getreg_b32 s{SB + 3}, hwreg(HW_REG_XCC_ID)')
        P(f'v_mov_b32 v2, s{SB + 3}')
        P(f'buffer_store_dword v2, v1, {s(ws, 4)}, s{SB + 1} offen offset:124')
        regs = [SB, SB + 2] + [SB + 4 + 2 * i for i in range(n + 1)]
        for k, r in enumerate(regs):
            P(f'v_mov_b32 v2, s{r}')
            P(f'buffer_store_dword v2, v1, {s(ws, 4)}, s{SB + 1} offen offset:{4 * k}')
    P('s_endpgm')


def mfma(P, d, x, y, c):
    P(f'v_mfma_f32_16x16x32_bf16 {d}, {x}, {y}, {c}')


def unpack(P, lo, hi, src):
    P(f'v_lshlrev_b32 {v(lo)}, 16, {v(src)}')
    P(f'v_and_b32 {v(hi)}, 0xffff0000, {v(src)}')


def dpp_add(P, d, x, y, ctl, row=0xf, bank=0xf):
    P(f'v_add_f32_dpp {v(d)}, {v(x)}, {v(y)} {ctl} row_mask:{row:#x} bank_mask:{bank:#x}')


def ln_finish(P, pairs, n, tmps):
    for (sm, sq), t in zip(pairs, tmps):
        P(f'v_mul_f32 {v(sm)}, {fl(-1.0 / n)}, {v(sm)}')
        P(f'v_mul_f32 {v(sq)}, {fl(1.0 / n)}, {v(sq)}')
    for (sm, sq), t in zip(pairs, tmps):
        P(f'v_fma_f32 {v(sq)}, -{v(sm)}, {v(sm)}, {v(sq)}')
    for (sm, sq), t in zip(pairs, tmps):
        P(f'v_max_f32 {v(sq)}, 0, {v(sq)}')
    for (sm, sq), t in zip(pairs, tmps):
        P(f'v_add_f32 {v(sq)}, {fl(1e-5)}, {v(sq)}')
    for (sm, sq), t in zip(pairs, tmps):
        P(f'v_rsq_f32 {v(sq)}, {v(sq)}')
    for (sm, sq), t in zip(pairs, tmps):
        P(f'v_mul_f32 {v(sm)}, {v(sm)}, {v(sq)}')


KA_FT, KA_PF, KA_GV, KA_WI, KA_WO, KA_END, KA_GRID = 0, 256, 264, 392, 472, 500, 504
KA_LDS = 32 * 1296


def gen_ka():
    P = Prog('ka_kernel')
    WS, SRC, TB = 4, 8, 12
    T0, T1, T2, T3 = 18, 19, 20, 21
    stamp(P, 0)
    srd(P, WS, KA_WS, WS_END)
    P(f's_cmp_ge_u32 s2, {KA_PF}')
    P('s_cbranch_scc1 ka_other')

    srd(P, SRC, KA_X, S * 1280)
    S1, CS = 16, 17
    P(f's_lshr_b32 s{T1}, s2, 6')
    P(f's_and_b32 s{S1}, s2, 7')
    P(f's_lshl3_add_u32 s{S1}, s{T1}, s{S1}')
    P(f's_bfe_u32 s{CS}, s2, 0x30003')
    A = Alloc(1, 128)
    vj, vrow, vc, vt, vu = [A.get() for _ in range(5)]
    addr = [A.get() for _ in range(5)]
    X = [[A.get(4) for _ in range(5)] for _ in range(2)]
    FA = [A.get(4) for _ in range(2)]
    st = [A.get() for _ in range(4)]
    one = A.get()
    tmp = [A.get() for _ in range(4)]
    Dm = [A.get(4) for _ in range(5)]
    PK = A.get(12)
    P(f'v_and_b32 {v(vj)}, 15, v0')
    P(f'v_lshrrev_b32 {v(vrow)}, 4, v0')
    P(f's_mul_i32 s{T0}, s{S1}, 1280')
    P(f's_mul_i32 s{T2}, s{CS}, 160')
    P(f'v_lshl_add_u32 {v(vc)}, {v(vj)}, 4, s{T2}')
    P(f'v_mul_u32_u24 {v(vt)}, 40960, {v(vrow)}')
    P(f's_add_u32 s{T1}, s{T0}, {32 * 40960}')
    for i in range(5):
        r = addr[i]
        P(f'v_add_u32 {v(r)}, {(256 * i - 1280) & 0xffffffff:#x}, {v(vc)}')
        if i:
            P(f'v_add_u32 {v(vu)}, {256 * i}, {v(vc)}')
        P(f'v_min_u32 {v(r)}, {v(r)}, {v(vu if i else vc)}')
        P(f'v_add_u32 {v(r)}, {v(r)}, {v(vt)}')
        P(f'buffer_load_dwordx4 {v(X[0][i], 4)}, {v(r)}, {s(SRC, 4)}, s{T0} offen')
    for i in range(5):
        P(f'buffer_load_dwordx4 {v(X[1][i], 4)}, {v(addr[i])}, {s(SRC, 4)}, s{T1} offen')
    pcsrd(P, TB, f'ctab+{CT_FA}', 8192)
    P(f'v_and_b32 {v(vu)}, 63, v0')
    P(f'v_bfe_u32 {v(vt)}, v0, 6, 2')
    P(f'v_lshlrev_b32 {v(vu)}, 4, {v(vu)}')
    P(f'v_lshl_add_u32 {v(vu)}, {v(vt)}, 11, {v(vu)}')
    for ks in range(2):
        P(f'buffer_load_dwordx4 {v(FA[ks], 4)}, {v(vu)}, {s(TB, 4)}, 0 offen offset:{1024 * ks}')
    stamp(P, 1)
    P(f'v_mov_b32 {v(one)}, 0x3f803f80')
    for r in st:
        P(f'v_mov_b32 {v(r)}, 0')
    vw, vr, vs = addr[0], addr[1], addr[2]
    P(f'v_mul_u32_u24 {v(vw)}, 160, {v(vrow)}')
    P(f'v_lshl_add_u32 {v(vw)}, {v(vj)}, 4, {v(vw)}')
    P(f'v_bfe_u32 {v(vr)}, v0, 2, 4')
    P(f'v_mul_u32_u24 {v(vr)}, 160, {v(vr)}')
    P(f'v_and_b32 {v(vt)}, 3, v0')
    P(f'v_mad_u32_u24 {v(vr)}, {v(vt)}, 40, {v(vr)}')
    P(f'v_bfe_u32 {v(vt)}, v0, 6, 1')
    P(f'v_lshl_add_u32 {v(vs)}, {v(vt)}, 4, {v(vj)}')
    P(f'v_mul_u32_u24 {v(vs)}, {T_BLK}, {v(vs)}')
    P(f'v_bfe_u32 {v(vt)}, v0, 7, 1')
    P(f'v_mul_u32_u24 {v(vt)}, {32 * T_ROW}, {v(vt)}')
    P(f'v_bfe_u32 {v(vu)}, v0, 4, 2')
    P(f'v_mad_u32_u24 {v(vt)}, {v(vu)}, 40, {v(vt)}')
    P(f'v_add_u32 {v(vs)}, {v(vs)}, {v(vt)}')
    P(f's_mul_i32 s{T0}, s{S1}, {T_ROW}')
    P(f's_add_u32 s{T0}, s{T0}, s{T2}')
    if T_OFF:
        P(f's_add_u32 s{T0}, s{T0}, {T_OFF}')
    for q in range(2):
        for i in range(5):
            for k in range(4):
                P(f'v_dot2c_f32_bf16 {v(st[2 * q])}, {v(X[q][i] + k)}, {v(one)}')
                P(f'v_dot2c_f32_bf16 {v(st[2 * q + 1])}, {v(X[q][i] + k)}, {v(X[q][i] + k)}')
    for ctl in ('row_ror:8', 'row_ror:4', 'row_ror:2', 'row_ror:1'):
        for r in st:
            dpp_add(P, r, r, r, ctl)
    ln_finish(P, [(st[0], st[1]), (st[2], st[3])], 640, tmp)
    for q in range(2):
        for k in range(4):
            x = X[q][0] + k
            lo, hi = tmp[2 * (k & 1)], tmp[2 * (k & 1) + 1]
            unpack(P, lo, hi, x)
            P(f'v_fma_f32 {v(lo)}, {v(lo)}, {v(st[2 * q + 1])}, {v(st[2 * q])}')
            P(f'v_fma_f32 {v(hi)}, {v(hi)}, {v(st[2 * q + 1])}, {v(st[2 * q])}')
            P(f'v_cvt_pk_bf16_f32 {v(x)}, {v(lo)}, {v(hi)}')
    P('s_mov_b32 exec_lo, 0x03ff03ff')
    P('s_mov_b32 exec_hi, 0x03ff03ff')
    for q in range(2):
        P(f'ds_write_b128 {v(vw)}, {v(X[q][0], 4)} offset:{5120 * q}', tw=['xn'])
    P('s_mov_b64 exec, -1')
    P(f'v_readfirstlane_b32 s{T1}, v0')
    stamp(P, 2)
    P.need('xn')
    P('s_barrier')
    stamp(P, 3)
    P(f's_cmp_ge_u32 s{T1}, 256')
    P('s_cbranch_scc1 ka_done')
    for ks in range(2):
        for b in range(5):
            for h in range(2):
                P(f'ds_read_b64_tr_b16 {v(X[ks][b] + 2 * h, 2)}, {v(vr)} offset:{(32 * ks + 16 * h) * 160 + 8 * b}')
    for ks in range(2):
        for b in range(5):
            mfma(P, v(Dm[b], 4), v(X[ks][b], 4), v(FA[ks], 4), v(Dm[b], 4) if ks else '0')
    for b in range(5):
        P(f'v_cvt_pk_bf16_f32 {v(PK + 2 * b)}, {v(Dm[b])}, {v(Dm[b] + 1)}')
        P(f'v_cvt_pk_bf16_f32 {v(PK + 2 * b + 1)}, {v(Dm[b] + 2)}, {v(Dm[b] + 3)}')
    P(f'buffer_store_dwordx4 {v(PK, 4)}, {v(vs)}, {s(WS, 4)}, s{T0} offen')
    P(f'buffer_store_dwordx4 {v(PK + 4, 4)}, {v(vs)}, {s(WS, 4)}, s{T0} offen offset:16')
    P(f'buffer_store_dwordx2 {v(PK + 8, 2)}, {v(vs)}, {s(WS, 4)}, s{T0} offen offset:32')
    endpgm(P, 4)
    P.label('ka_done')
    P('s_endpgm')

    P.label('ka_other')
    P(f's_cmp_ge_u32 s2, {KA_WI}')
    P('s_cbranch_scc1 ka_re')
    P(f's_cmp_ge_u32 s2, {KA_GV}')
    P('s_cbranch_scc1 ka_gv')
    code_prefetch(P, SRC, 1, 8, 'ka_gv', 'code_end', 512, 3, guard=False)
    P('v_lshlrev_b32 v2, 4, v0')
    for k in range(4):
        P(f'v_mov_b32 v{4 + k}, -1')
    P(f's_lshl_b32 s{T0}, s2, 15')
    P(f's_add_u32 s{T0}, s{T0}, {GRAN_OFF - (KA_PF << 15)}')
    for k in range(4):
        P(f'buffer_store_dwordx4 v[4:7], v2, {s(WS, 4)}, s{T0} offen{WT}')
        if k < 3:
            P(f's_add_u32 s{T0}, s{T0}, 8192')
    P(f's_lshl_b32 s{T0}, s2, 13')
    P(f's_add_u32 s{T0}, s{T0}, {FL1_OFF - (KA_PF << 13)}')
    P(f'buffer_store_dwordx4 v[4:7], v2, {s(WS, 4)}, s{T0} offen{WT}')
    stamp(P, 1)
    stamp(P, 2)
    stamp(P, 3)
    endpgm(P, 4)

    P.label('ka_gv')
    GI = 16
    P(f'v_readfirstlane_b32 s{T1}, v0')
    P(f's_sub_u32 s{T0}, s2, {KA_GV}')
    P(f's_and_b32 s{GI}, s{T0}, 0x70')
    P(f's_and_b32 s{T2}, s{T0}, 7')
    P(f's_lshl1_add_u32 s{GI}, s{T2}, s{GI}')
    P(f's_bfe_u32 s{T2}, s{T0}, 0x10003')
    P(f's_add_u32 s{GI}, s{GI}, s{T2}')
    P(f's_cmp_ge_u32 s{GI}, 120')
    P('s_cbranch_scc1 ka_done')
    P(f's_cmp_ge_u32 s{T1}, 256')
    P('s_cbranch_scc1 ka_done')
    srd(P, SRC, KA_WMOD, 640 * 7680)
    srd(P, TB, KA_C, 1280)
    A = Alloc(1, 128)
    vrs, vo, vc = A.get(), A.get(), A.get()
    C4 = A.get(4)
    C1 = A.get()
    W = [A.get(4) for _ in range(10)]
    acc = A.get(8)
    sv = A.get(10)
    ev = A.get(10)
    pk = A.get(5)
    tt = A.get(2)
    P(f'v_lshrrev_b32 {v(vrs)}, 2, v0')
    P(f'v_mul_u32_u24 {v(vc)}, 20, {v(vrs)}')
    P(f'v_mul_u32_u24 {v(vo)}, 76800, {v(vrs)}')
    P(f'v_and_b32 {v(tt)}, 3, v0')
    P(f'v_lshl_add_u32 {v(vo)}, {v(tt)}, 4, {v(vo)}')
    P(f's_lshl_b32 s{T0}, s{GI}, 6')
    P(f'buffer_load_dwordx4 {v(C4, 4)}, {v(vc)}, {s(TB, 4)}, 0 offen')
    P(f'buffer_load_dword {v(C1)}, {v(vc)}, {s(TB, 4)}, 0 offen offset:16')
    for i in range(10):
        P(f'buffer_load_dwordx4 {v(W[i], 4)}, {v(vo)}, {s(SRC, 4)}, s{T0} offen')
        if i < 9:
            P(f's_add_u32 s{T0}, s{T0}, 7680')
    stamp(P, 1)
    for k in range(8):
        P(f'v_mov_b32 {v(acc + k)}, 0')
    P(f's_mov_b32 s{T2}, 0x05040100')
    P(f's_mov_b32 s{T3}, 0x07060302')
    for p in range(5):
        unpack(P, sv + 2 * p, sv + 2 * p + 1, C4 + p if p < 4 else C1)
    for k in range(10):
        P(f'v_mul_f32 {v(ev + k)}, {fl(-LOG2E)}, {v(sv + k)}')
    for k in range(10):
        P(f'v_exp_f32 {v(ev + k)}, {v(ev + k)}')
    for k in range(10):
        P(f'v_add_f32 {v(ev + k)}, 1.0, {v(ev + k)}')
    for k in range(10):
        P(f'v_rcp_f32 {v(ev + k)}, {v(ev + k)}')
    for k in range(10):
        P(f'v_mul_f32 {v(sv + k)}, {v(sv + k)}, {v(ev + k)}')
    for p in range(5):
        P(f'v_cvt_pk_bf16_f32 {v(pk + p)}, {v(sv + 2 * p)}, {v(sv + 2 * p + 1)}')
    for p in range(5):
        for k in range(4):
            P(f'v_perm_b32 {v(ev + 2 * k)}, {v(W[2 * p + 1] + k)}, {v(W[2 * p] + k)}, s{T2}')
            P(f'v_perm_b32 {v(ev + 2 * k + 1)}, {v(W[2 * p + 1] + k)}, {v(W[2 * p] + k)}, s{T3}')
        for k in range(8):
            P(f'v_dot2c_f32_bf16 {v(acc + k)}, {v(ev + k)}, {v(pk + p)}')
    for k in range(4):
        P(f'v_permlane32_swap_b32 {v(acc + k)}, {v(acc + k + 4)}')
    for k in range(4):
        P(f'v_add_f32 {v(acc + k)}, {v(acc + k)}, {v(acc + k + 4)}')
    for k in range(2):
        P(f'v_permlane16_swap_b32 {v(acc + k)}, {v(acc + k + 2)}')
    for k in range(2):
        P(f'v_add_f32 {v(acc + k)}, {v(acc + k)}, {v(acc + k + 2)}')
    dpp_add(P, acc, acc, acc, 'row_ror:8', bank=0x3)
    dpp_add(P, acc, acc + 1, acc + 1, 'row_ror:8', bank=0xc)
    P(f'v_bfe_u32 {v(vo)}, v0, 5, 1')
    P(f'v_lshl_add_u32 {v(vo)}, {v(tt)}, 1, {v(vo)}')
    P(f'v_bfe_u32 {v(vc)}, v0, 4, 1')
    P(f'v_lshl_add_u32 {v(vo)}, {v(vo)}, 1, {v(vc)}')
    P(f'v_bfe_u32 {v(vc)}, v0, 3, 1')
    P(f'v_lshl_add_u32 {v(vo)}, {v(vo)}, 1, {v(vc)}')
    P(f'v_lshrrev_b32 {v(vc)}, 6, v0')
    P(f'v_lshlrev_b32 {v(vc)}, 3, {v(vc)}')
    P(f'v_and_b32 {v(tt)}, 4, v0')
    P(f'v_add_u32 {v(vc)}, {v(vc)}, {v(tt)}')
    P(f'v_lshl_add_u32 {v(vo)}, {v(vo)}, 5, {v(vc)}')
    P(f'ds_write_b32 {v(vo)}, {v(acc)}', tw=['part'])
    P(f'v_lshlrev_b32 {v(vo)}, 5, v0')
    stamp(P, 2)
    P.need('part')
    P('s_barrier')
    stamp(P, 3)
    P(f's_cmp_ge_u32 s{T1}, 64')
    P('s_cbranch_scc1 ka_done')
    P(f'ds_read_b128 {v(W[0], 4)}, {v(vo)}')
    P(f'ds_read_b128 {v(W[1], 4)}, {v(vo)} offset:16')
    for k in range(4):
        P(f'v_add_f32 {v(W[0] + k)}, {v(W[0] + k)}, {v(W[1] + k)}')
    P(f'v_add_f32 {v(W[0])}, {v(W[0])}, {v(W[0] + 1)}')
    P(f'v_add_f32 {v(W[0] + 2)}, {v(W[0] + 2)}, {v(W[0] + 3)}')
    P(f'v_add_f32 {v(W[0])}, {v(W[0])}, {v(W[0] + 2)}')
    P(f'v_cvt_pk_bf16_f32 {v(W[0])}, {v(W[0])}, {v(W[0])}')
    P(f'v_and_b32 {v(W[0])}, 0xffff0000, {v(W[0])}')
    P(f's_mov_b32 s{T1}, 0')
    P(f's_sub_u32 s{T0}, s{GI}, 20')
    P(f's_cmp_lt_u32 s{T0}, 20')
    P(f's_cselect_b32 s{T1}, 1.0, s{T1}')
    P(f's_sub_u32 s{T0}, s{GI}, 80')
    P(f's_cmp_lt_u32 s{T0}, 20')
    P(f's_cselect_b32 s{T1}, 1.0, s{T1}')
    P(f'v_add_f32 {v(W[0])}, s{T1}, {v(W[0])}')
    P(f'v_cvt_pk_bf16_f32 {v(W[0])}, {v(W[0])}, {v(W[0])}')
    P(f'v_and_b32 {v(W[0])}, 0xffff0000, {v(W[0])}')
    P(f'v_lshlrev_b32 {v(vo)}, 2, v0')
    P(f's_lshl_b32 s{T0}, s{GI}, 7')
    P(f's_add_u32 s{T0}, s{T0}, {MOD_OFF}')
    P('s_mov_b32 exec_hi, 0')
    P(f'buffer_store_dword {v(W[0])}, {v(vo)}, {s(WS, 4)}, s{T0} offen')
    endpgm(P, 4)

    P.label('ka_re')
    P(f's_cmp_ge_u32 s2, {KA_WO}')
    P('s_cbranch_scc1 ka_wo')
    srd(P, SRC, KA_WIN, 640 * 3456)
    A = Alloc(1, 128)
    vrl, vu, vo, vw, vr, vt, vq = [A.get() for _ in range(7)]
    W = [A.get(2) for _ in range(8)]
    Fr = [A.get(4) for _ in range(5)]
    NT, KQ, STP = 16, 17, 22
    P(f's_sub_u32 s{T0}, s2, {KA_WI}')
    P(f's_and_b32 s{NT}, s{T0}, 15')
    P(f's_lshr_b32 s{KQ}, s{T0}, 4')
    P(f'v_lshrrev_b32 {v(vrl)}, 5, v0')
    P(f'v_and_b32 {v(vu)}, 15, v0')
    P(f'v_mul_u32_u24 {v(vo)}, 3456, {v(vrl)}')
    P(f'v_lshl_add_u32 {v(vo)}, {v(vu)}, 3, {v(vo)}')
    P(f'v_bfe_u32 {v(vt)}, v0, 4, 1')
    P(f'v_mul_u32_u24 {v(vt)}, 1728, {v(vt)}')
    P(f'v_sub_u32 {v(vo)}, {v(vo)}, {v(vt)}')
    P(f'v_add_u32 {v(vo)}, 1728, {v(vo)}')
    P(f'v_mov_b32 {v(vt)}, {OOB:#x}')
    P(f'v_cmp_gt_u32 vcc, 14, {v(vu)}')
    P(f's_mul_i32 s{T0}, s{KQ}, {128 * 3456}')
    P(f's_mul_i32 s{T1}, s{NT}, 108')
    P(f'v_cndmask_b32 {v(vo)}, {v(vt)}, {v(vo)}, vcc')
    P(f's_add_u32 s{T0}, s{T0}, s{T1}')
    for i in range(8):
        P(f'buffer_load_dwordx2 {v(W[i], 2)}, {v(vo)}, {s(SRC, 4)}, s{T0} offen')
        if i < 7:
            P(f's_add_u32 s{T0}, s{T0}, {16 * 3456}')
    stamp(P, 1)
    P(f'v_cmp_gt_u32 vcc, 13, {v(vu)}')
    P(f'v_mul_u32_u24 {v(vw)}, 272, {v(vrl)}')
    P(f'v_and_b32 {v(vt)}, 31, v0')
    P(f'v_lshl_add_u32 {v(vw)}, {v(vt)}, 3, {v(vw)}')
    P(f'v_readfirstlane_b32 s{T1}, v0')
    P(f's_lshr_b32 s{T1}, s{T1}, 6')
    P(f'v_bfe_u32 {v(vr)}, v0, 4, 2')
    P(f'v_bfe_u32 {v(vt)}, v0, 2, 2')
    P(f'v_lshl_add_u32 {v(vr)}, {v(vr)}, 3, {v(vt)}')
    P(f'v_mul_u32_u24 {v(vr)}, 272, {v(vr)}')
    P(f'v_and_b32 {v(vt)}, 3, v0')
    P(f's_and_b32 s{T2}, s{T1}, 3')
    P(f's_cmp_eq_u32 s{T2}, 3')
    P('s_cbranch_scc1 ka_wx')
    P(f's_lshl_b32 s{T3}, s{T2}, 3')
    P(f's_cmp_eq_u32 s{T2}, 2')
    P(f's_cselect_b32 s{T3}, 64, s{T3}')
    P(f's_cselect_b32 s{T2}, 3, 4')
    P(f'v_lshlrev_b32 {v(vt)}, s{T2}, {v(vt)}')
    P(f's_and_b32 s{T2}, s{T1}, 4')
    P(f's_lshl_b32 s{T2}, s{T2}, 5')
    P(f's_add_u32 s{T3}, s{T3}, s{T2}')
    P(f'v_add3_u32 {v(vr)}, {v(vr)}, {v(vt)}, s{T3}')
    P('s_branch ka_wy')
    P.label('ka_wx')
    P(f's_and_b32 s{T3}, s{NT}, 1')
    P(f'v_lshrrev_b32 {v(vq)}, 1, {v(vt)}')
    P(f'v_xor_b32 {v(vq)}, s{T3}, {v(vq)}')
    P(f'v_lshl_add_u32 {v(vr)}, {v(vq)}, 7, {v(vr)}')
    P(f'v_and_b32 {v(vt)}, 1, {v(vt)}')
    P(f'v_lshl_add_u32 {v(vr)}, {v(vt)}, 3, {v(vr)}')
    P(f'v_add_u32 {v(vr)}, 96, {v(vr)}')
    P.label('ka_wy')
    P(f'v_and_b32 {v(vo)}, 63, v0')
    P(f'v_lshlrev_b32 {v(vo)}, 4, {v(vo)}')
    P(f's_mul_i32 s{T0}, s{KQ}, {4 * 7168}')
    P(f's_lshl_b32 s{T2}, s{T1}, 10')
    P(f's_add_u32 s{T0}, s{T0}, s{T2}')
    P(f's_mul_i32 s{T2}, s{NT}, 143360')
    P(f's_add_u32 s{T0}, s{T0}, s{T2}')
    P(f's_add_u32 s{T0}, s{T0}, {WIN_OFF}')
    for i in range(8):
        P(f'v_cndmask_b32 {v(W[i] + 1)}, 0, {v(W[i] + 1)}, vcc')
        P(f'ds_write_b64 {v(vw)}, {v(W[i], 2)} offset:{i * 16 * 272}', tw=['img'])
    stamp(P, 2)
    P.need('img')
    P('s_barrier')
    stamp(P, 3)
    P(f's_cmp_ge_u32 s{T1}, 7')
    P('s_cbranch_scc1 ka_done')
    for k in range(4):
        for h in range(2):
            P(f'ds_read_b64_tr_b16 {v(Fr[k] + 2 * h, 2)}, {v(vr)} offset:{(32 * k + 4 * h) * 272}')
    for k in range(4):
        P(f'buffer_store_dwordx4 {v(Fr[k], 4)}, {v(vo)}, {s(WS, 4)}, s{T0} offen{WT}')
        if k < 3:
            P(f's_add_u32 s{T0}, s{T0}, 7168')
    endpgm(P, 4)

    P.label('ka_wo')
    P(f's_cmp_ge_u32 s2, {KA_END}')
    P('s_cbranch_scc1 ka_done')
    srd(P, SRC, KA_WOUT, 864 * 1280)
    assert all((f * 1171) >> 17 == f // 112 for f in range(896))
    W = [A.get(4) for _ in range(5)]
    KS = 16
    P(f's_sub_u32 s{KS}, s2, {KA_WO}')
    P(f's_lshl_b32 s{T0}, s{KS}, 5')
    P(f'v_lshrrev_b32 {v(vrl)}, 4, v0')
    P(f'v_add_u32 {v(vo)}, s{T0}, {v(vrl)}')
    P(f'v_mul_u32_u24 {v(vt)}, 1171, {v(vo)}')
    P(f'v_lshrrev_b32 {v(vt)}, 17, {v(vt)}')
    P(f'v_mul_u32_u24 {v(vu)}, 112, {v(vt)}')
    P(f'v_sub_u32 {v(vu)}, {v(vo)}, {v(vu)}')
    P(f'v_mul_u32_u24 {v(vo)}, 108, {v(vt)}')
    P(f'v_lshrrev_b32 {v(vq)}, 5, {v(vu)}')
    P(f'v_and_b32 {v(vw)}, 31, {v(vu)}')
    P(f'v_cmp_le_u32 vcc, 64, {v(vu)}')
    P(f'v_bfe_u32 {v(vt)}, {v(vu)}, 3, 2')
    P(f'v_and_b32 {v(vr)}, 3, {v(vu)}')
    P(f'v_lshl_add_u32 {v(vr)}, {v(vt)}, 2, {v(vr)}')
    P(f'v_add_u32 {v(vr)}, 32, {v(vr)}')
    P(f'v_bfe_u32 {v(vt)}, {v(vu)}, 2, 1')
    P(f'v_cndmask_b32 {v(vq)}, {v(vq)}, {v(vt)}, vcc')
    P(f'v_cndmask_b32 {v(vw)}, {v(vw)}, {v(vr)}, vcc')
    P(f'v_cmp_le_u32 vcc, 96, {v(vu)}')
    P(f'v_bfe_u32 {v(vt)}, {v(vu)}, 3, 1')
    P(f'v_and_b32 {v(vr)}, 7, {v(vu)}')
    P(f'v_add_u32 {v(vr)}, 48, {v(vr)}')
    P(f'v_cndmask_b32 {v(vq)}, {v(vq)}, {v(vt)}, vcc')
    P(f'v_cndmask_b32 {v(vw)}, {v(vw)}, {v(vr)}, vcc')
    P(f'v_cmp_gt_u32 vcc, 54, {v(vw)}')
    P(f'v_mad_u32_u24 {v(vo)}, {v(vq)}, 54, {v(vo)}')
    P(f'v_add_u32 {v(vo)}, {v(vo)}, {v(vw)}')
    P(f'v_mul_u32_u24 {v(vo)}, 1280, {v(vo)}')
    P(f'v_and_b32 {v(vu)}, 15, v0')
    P(f'v_lshl_add_u32 {v(vo)}, {v(vu)}, 4, {v(vo)}')
    P(f'v_mov_b32 {v(vt)}, {OOB:#x}')
    P(f'v_cndmask_b32 {v(vo)}, {v(vt)}, {v(vo)}, vcc')
    for i in range(5):
        P(f'buffer_load_dwordx4 {v(W[i], 4)}, {v(vo)}, {s(SRC, 4)}, 0 offen offset:{256 * i}')
    stamp(P, 1)
    P(f'v_mul_u32_u24 {v(vw)}, 1296, {v(vrl)}')
    P(f'v_lshl_add_u32 {v(vw)}, {v(vu)}, 4, {v(vw)}')
    P(f'v_readfirstlane_b32 s{T1}, v0')
    P(f's_lshr_b32 s{T1}, s{T1}, 6')
    P(f'v_bfe_u32 {v(vr)}, v0, 4, 2')
    P(f'v_bfe_u32 {v(vt)}, v0, 2, 2')
    P(f'v_lshl_add_u32 {v(vr)}, {v(vr)}, 3, {v(vt)}')
    P(f'v_mul_u32_u24 {v(vr)}, 1296, {v(vr)}')
    P(f'v_and_b32 {v(vt)}, 3, v0')
    P(f'v_lshlrev_b32 {v(vt)}, 3, {v(vt)}')
    P(f's_mul_i32 s{T2}, s{T1}, 160')
    P(f'v_add3_u32 {v(vr)}, {v(vr)}, {v(vt)}, s{T2}')
    P(f'v_and_b32 {v(vo)}, 63, v0')
    P(f'v_lshlrev_b32 {v(vo)}, 4, {v(vo)}')
    P(f's_mul_i32 s{T0}, s{T1}, 28')
    P(f's_add_u32 s{T0}, s{T0}, s{KS}')
    P(f's_mul_i32 s{T0}, s{T0}, 5120')
    P(f's_add_u32 s{T0}, s{T0}, {WOUT_OFF}')
    P(f's_add_u32 s{T2}, s{T0}, 4096')
    for i in range(5):
        P(f'ds_write_b128 {v(vw)}, {v(W[i], 4)} offset:{256 * i}', tw=['img2'])
    stamp(P, 2)
    P.need('img2')
    P('s_barrier')
    stamp(P, 3)
    for nb in range(5):
        for h in range(2):
            P(f'ds_read_b64_tr_b16 {v(Fr[nb] + 2 * h, 2)}, {v(vr)} offset:{4 * h * 1296 + 32 * nb}')
    for nb in range(5):
        if nb < 4:
            P(f'buffer_store_dwordx4 {v(Fr[nb], 4)}, {v(vo)}, {s(WS, 4)}, s{T0} offen offset:{1024 * nb}{WT}')
        else:
            P(f'buffer_store_dwordx4 {v(Fr[nb], 4)}, {v(vo)}, {s(WS, 4)}, s{T2} offen{WT}')
    endpgm(P, 4)
    return P


def weave(P, main, side, per):
    for m in main:
        m()
        for _ in range(per):
            if side:
                side.pop(0)()


class Rec:
    def __init__(self, P):
        self.P = P
        self.q = []

    def __call__(self, text, tw=(), tr=()):
        self.q.append(lambda: self.P(text, tw, tr))

    def need(self, *t):
        self.q.append(lambda: self.P.need(*t))


def l2_prefetch(P, R, vaddr, soff, vdst, n, step):
    for e in range(n):
        P(f'buffer_load_dwordx4 {v(vdst + 4 * e, 4)}, {v(vaddr)}, {s(R, 4)}, s{soff} offen')
        if e < n - 1:
            P(f's_add_u32 s{soff}, s{soff}, {step}')


KB_MOD, KB_CT, KB_G = 83968, 98304, 114688
GS = 1288
KB_LDS = KB_G + 16 * GS


def gen_kb():
    P = Prog('kb_kernel')
    WS, XS, TB, PF = 4, 8, 12, 20
    T2, JJ, W, TBK, T0, T1, TT, AM0, AM1, SH1, TD = range(24, 35)
    P('s_cmp_ge_u32 s2, 256')
    P('s_cbranch_scc1 kb_done')
    stamp(P, 0)
    srd(P, WS, KA_WS, WS_END)
    srd(P, XS, KA_X, S * 1280)
    pcsrd(P, TB, 'ctab', 16384)
    A = Alloc(1, 256)
    vl, vl16, vt, vu = [A.get() for _ in range(4)]
    P(f'v_readfirstlane_b32 s{W}, v0')
    P(f'v_and_b32 {v(vl)}, 63, v0')
    P(f'v_lshlrev_b32 {v(vl16)}, 4, {v(vl)}')
    P(f's_lshr_b32 s{W}, s{W}, 6')
    P(f's_lshl_b32 s{T1}, s{W}, 11')
    P(f's_add_u32 m0, s{T1}, {KB_CT}')
    P(f's_and_b32 s{T2}, s2, 7')
    for e in range(2):
        P(f'buffer_load_dwordx4 {v(vl16)}, {s(TB, 4)}, s{T1} offen offset:{1024 * e} lds', tw=['CT'])
    P(f's_bfe_u32 s{T0}, s2, 0x30003')
    P(f's_lshl3_add_u32 s{T2}, s{T2}, s{T0}')
    P(f's_lshr_b32 s{JJ}, s2, 6')
    P(f's_sub_u32 s{T0}, 64, s{T2}')
    P(f's_min_u32 s{TBK}, s{T0}, s{T2}')
    P(f's_and_b32 s{TBK}, s{TBK}, 31')
    P(f's_mul_i32 s{TBK}, s{TBK}, {T_BLK}')
    if T_OFF:
        P(f's_add_u32 s{TBK}, s{TBK}, {T_OFF}')
    P(f's_add_u32 m0, s{T1}, 81920')
    P(f's_add_u32 s{T0}, s{TBK}, 81920')
    P(f's_add_u32 s{TT}, s{T1}, {MOD_OFF - 2048}')
    P(f's_cmp_eq_u32 s{W}, 0')
    P(f's_cselect_b32 s{T0}, s{T0}, s{TT}')
    for e in range(2):
        P(f'buffer_load_dwordx4 {v(vl16)}, {s(WS, 4)}, s{T0} offen offset:{1024 * e} lds', tw=['CT'])
    P(f's_mul_i32 s{TD}, s{W}, 10240')
    P(f's_mov_b32 m0, s{TD}')
    P(f's_add_u32 s{TD}, s{TD}, s{TBK}')
    L = Rec(P)
    for i in range(10):
        def one(i=i):
            if i and i % 4 == 0:
                P('s_add_u32 m0, m0, 4096')
                P(f's_add_u32 s{TD}, s{TD}, 4096')
            P(f'buffer_load_dwordx4 {v(vl16)}, {s(WS, 4)}, s{TD} offen offset:{1024 * (i % 4)} lds', tw=['T'])
        L.q.append(one)
    Q = Rec(P)
    XR = [A.get(4) for _ in range(2)]
    vx = A.get()
    Q(f's_lshl3_add_u32 s{TT}, s{JJ}, s{W}')
    Q(f's_lshl_b32 s{TT}, s{TT}, 6')
    Q(f's_add_u32 s{TT}, s{TT}, s{T2}')
    Q(f'v_mov_b32 {v(vt)}, {OOB:#x}')
    Q(f'v_cmp_gt_u32 vcc, 40, {v(vl)}')
    Q(f'v_cndmask_b32 {v(vx)}, {v(vt)}, {v(vl16)}, vcc')
    CF = [A.get(4) for _ in range(2)]
    va, vb0, vb1, vg = [A.get() for _ in range(4)]
    cv = A.get(8)
    Q(f's_cmp_eq_u32 s{T2}, 32\ns_cselect_b32 s{AM0}, 0, -1\ns_cselect_b32 s{SH1}, 0, {fl(-0.25)}')
    Q(f's_cmp_gt_u32 s{T2}, 32\ns_cselect_b32 s{SH1}, {fl(0.25)}, s{SH1}')
    Q(f's_cmp_eq_u32 s{T2}, 0\ns_cselect_b32 s{AM1}, 0, -1')
    Q(f's_lshl_b32 s{T0}, s{JJ}, 9')
    Q(f's_add_u32 s{T0}, s{T0}, s{T2}')
    Q(f'v_bfe_u32 {v(va)}, v0, 1, 3')
    Q(f'v_lshl_add_u32 {v(va)}, {v(va)}, 6, s{T0}')
    Q(f'v_cvt_f32_u32 {v(va)}, {v(va)}')
    Q(f'v_mul_f32 {v(va)}, {fl(1.0 / 2048)}, {v(va)}')
    Q(f'v_bfe_u32 {v(vg)}, v0, 4, 2')
    Q(f'v_cvt_f32_u32 {v(vb0)}, {v(vg)}')
    Q(f'v_mul_f32 {v(vb0)}, 4.0, {v(vb0)}')
    Q(f'v_and_b32 {v(vt)}, 1, v0')
    Q(f'v_cvt_f32_u32 {v(vt)}, {v(vt)}')
    Q(f'v_mul_f32 {v(vt)}, {fl(0.25)}, {v(vt)}')
    Q(f'v_fma_f32 {v(vb0)}, {v(vb0)}, {v(va)}, {v(vt)}')
    Q(f'v_add_f32 {v(vb1)}, s{SH1}, {v(vb0)}')
    for ks in range(2):
        vb = (vb0, vb1)[ks]
        for q in range(8):
            kk = 16 * (q >> 2) + (q & 3)
            if kk:
                Q(f'v_fmamk_f32 {v(cv + q)}, {v(va)}, {fl(kk)}, {v(vb)}')
        for q in range(8):
            Q(f'v_cos_f32 {v(cv + q)}, {v(cv + q if q else vb)}')
        for k in range(4):
            Q(f'v_cvt_pk_bf16_f32 {v(CF[ks] + k)}, {v(cv + 2 * k)}, {v(cv + 2 * k + 1)}')
        for k in range(4):
            Q(f'v_and_b32 {v(CF[ks] + k)}, s{(AM0, AM1)[ks]}, {v(CF[ks] + k)}')
    vr1, vm1, vgw, vra0, vra1, vzw, vzr, vyw, vyr, vh, vmr, vct = [A.get() for _ in range(12)]
    Q(f's_mul_i32 s{T0}, s{W}, 160')
    Q(f'v_lshrrev_b32 {v(vt)}, 2, {v(vl)}')
    Q(f'v_mul_u32_u24 {v(vr1)}, {T_ROW}, {v(vt)}')
    Q(f'v_and_b32 {v(vu)}, 3, v0')
    Q(f'v_lshlrev_b32 {v(vu)}, 3, {v(vu)}')
    Q(f'v_add3_u32 {v(vr1)}, {v(vr1)}, {v(vu)}, s{T0}')
    Q(f's_lshl_b32 s{T1}, s{T0}, 1')
    Q(f's_add_u32 s{T1}, s{T1}, {KB_MOD}')
    Q(f'v_lshl_add_u32 {v(vm1)}, {v(vg)}, 4, s{T1}')
    Q(f'v_and_b32 {v(vh)}, 15, v0')
    Q(f'v_mul_u32_u24 {v(vgw)}, {GS}, {v(vh)}')
    Q(f'v_lshl_add_u32 {v(vgw)}, {v(vg)}, 3, {v(vgw)}')
    Q(f's_add_u32 s{T0}, s{T0}, {KB_G}')
    Q(f'v_add_u32 {v(vgw)}, s{T0}, {v(vgw)}')
    Q(f's_mul_i32 s{T0}, s{W}, {2 * GS}')
    Q(f's_add_u32 s{T0}, s{T0}, {KB_G}')
    Q(f'v_lshl_add_u32 {v(vra0)}, {v(vt)}, 6, {v(vu)}')
    Q(f'v_add_u32 {v(vra0)}, s{T0}, {v(vra0)}')
    Q(f'v_and_b32 {v(vt)}, 3, {v(vt)}')
    Q(f'v_lshl_add_u32 {v(vra1)}, {v(vt)}, 6, {v(vu)}')
    Q(f's_add_u32 s{T0}, s{T0}, 1024')
    Q(f'v_add_u32 {v(vra1)}, s{T0}, {v(vra1)}')
    Q(f's_lshl_b32 s{T0}, s{W}, 13')
    Q(f'v_mul_u32_u24 {v(vzw)}, 288, {v(vg)}')
    Q(f'v_lshl_add_u32 {v(vzw)}, {v(vh)}, 2, {v(vzw)}')
    Q(f'v_add_u32 {v(vzw)}, s{T0}, {v(vzw)}')
    Q(f'v_mul_u32_u24 {v(vzr)}, 144, {v(vh)}')
    Q(f'v_lshl_add_u32 {v(vzr)}, {v(vg)}, 4, {v(vzr)}')
    Q(f'v_add_u32 {v(vzr)}, s{T0}, {v(vzr)}')
    Q(f's_add_u32 s{T0}, s{T0}, 4608')
    Q(f'v_mul_u32_u24 {v(vyw)}, 80, {v(vh)}')
    Q(f'v_lshl_add_u32 {v(vyw)}, {v(vg)}, 4, {v(vyw)}')
    Q(f'v_add_u32 {v(vyw)}, s{T0}, {v(vyw)}')
    Q(f'v_min_u32 {v(vt)}, 39, {v(vl)}')
    Q(f'v_lshlrev_b32 {v(vt)}, 5, {v(vt)}')
    Q(f'v_add_u32 {v(vyr)}, s{T0}, {v(vt)}')
    Q(f'v_add_u32 {v(vmr)}, {KB_MOD}, {v(vt)}')
    Q(f'v_add_u32 {v(vct)}, {KB_CT}, {v(vl16)}')
    weave(P, L.q, Q.q, 12)
    for o in Q.q:
        o()
    P(f's_mul_i32 s{T0}, s{TT}, 1280')
    for e in range(2):
        P(f'buffer_load_dwordx4 {v(XR[e], 4)}, {v(vx)}, {s(XS, 4)}, s{T0} offen offset:{640 * e}')
    stamp(P, 1)
    TFB = A.get(40)
    TF = [[TFB + 4 * (2 * mb + ks) for ks in range(2)] for mb in range(5)]
    MCB = A.get(40)
    MC = [MCB + 4 * mb for mb in range(5)]
    D1 = [MCB + 20 + 4 * mb for mb in range(5)]
    CA = [[A.get(4) for cp in range(2)] for mb in range(3)]
    TW = [[A.get(4) for nb in range(2)] for mb in range(3)]
    CB = [[A.get(4) for ks in range(2)] for nb in range(2)]
    GA = A.get(16)
    PFR = A.get(16)
    PFC = A.get(1)
    P.need('CT')
    P('s_barrier')
    for mb in range(5):
        P(f'ds_read_b128 {v(MC[mb], 4)}, {v(vm1)} offset:{2560 + 64 * mb}')
    for k in range(6):
        P(f'ds_read_b128 {v(CA[k >> 1][k & 1], 4)}, {v(vct)} offset:{CT_CA + 1024 * k}')
    for k in range(6):
        P(f'ds_read_b128 {v(TW[k >> 1][k & 1], 4)}, {v(vct)} offset:{CT_TW + 1024 * k}')
    for k in range(4):
        P(f'ds_read_b128 {v(CB[k >> 1][k & 1], 4)}, {v(vct)} offset:{CT_CB + 1024 * k}')
    for e in range(2):
        for k in range(2):
            P(f'ds_read_b128 {v(GA + 8 * e + 4 * k, 4)}, {v(vmr)} offset:{2 * 2560 + 1280 * e + 16 * k}')
    stamp(P, 2)
    P.need('T')
    P('s_barrier')
    stamp(P, 3)
    for mb in range(5):
        for ks in range(2):
            for h in range(2):
                P(f'ds_read_b64_tr_b16 {v(TF[mb][ks] + 2 * h, 2)}, {v(vr1)} offset:{(32 * ks + 16 * h) * T_ROW + 32 * mb}')
    if PREFETCH:
        P(f's_bfe_u32 s{T0}, s2, 0x10002')
        P(f's_mul_i32 s{T0}, s{T0}, {8 * 143360}')
        P(f's_lshr_b32 s{T1}, s2, 3')
        P(f's_mul_i32 s{T1}, s{T1}, {143360 // 4}')
        P(f's_add_u32 s{T0}, s{T0}, s{T1}')
        P(f's_add_u32 s{T0}, s{T0}, {WIN_OFF}')
        P(f'v_mul_u32_u24 {v(vt)}, 70, v0')
        P(f'v_and_b32 {v(vt)}, -4, {v(vt)}')
        P(f'buffer_load_dword {v(PFR)}, {v(vt)}, {s(WS, 4)}, s{T0} offen')
    code_prefetch(P, PF, vt, PFC, 'kg_kernel', 'ctab', 512, 1)
    for mb in range(5):
        for ks in range(2):
            mfma(P, v(D1[mb], 4), v(TF[mb][ks], 4), v(CF[ks], 4), v(D1[mb], 4) if ks else '0')
    for mb in range(5):
        for h in range(2):
            P(f'v_pk_mul_f32 {v(D1[mb] + 2 * h, 2)}, {v(D1[mb] + 2 * h, 2)}, {v(MC[mb] + 2 * h, 2)}')
    P('s_cmp_lg_u32 s2, 0')
    P('s_cbranch_scc1 kb_nodc')
    for mb in range(5):
        P(f'ds_read_b128 {v(MC[mb], 4)}, {v(vm1)} offset:{64 * mb}')
    P(f'v_cmp_eq_u32 vcc, 0, {v(vh)}')
    P(f'v_mov_b32 {v(vt)}, {fl(2048.0)}')
    P(f'v_cndmask_b32 {v(vt)}, 0, {v(vt)}, vcc')
    for mb in range(5):
        for i in range(4):
            P(f'v_fmac_f32 {v(D1[mb] + i)}, {v(MC[mb] + i)}, {v(vt)}')
    P.label('kb_nodc')
    for mb in range(5):
        P(f'v_cvt_pk_bf16_f32 {v(D1[mb])}, {v(D1[mb])}, {v(D1[mb] + 1)}')
        P(f'v_cvt_pk_bf16_f32 {v(D1[mb] + 1)}, {v(D1[mb] + 2)}, {v(D1[mb] + 3)}')
        P(f'ds_write_b64 {v(vgw)}, {v(D1[mb], 2)} offset:{32 * mb}', tw=['G'])
    stamp(P, 4)
    P.need('G')
    P('s_barrier')
    stamp(P, 5)
    GF = [[TFB + 4 * (2 * nb + cp) for cp in range(2)] for nb in range(2)]
    DA = [[TFB + 16 + 4 * (2 * mb + nb) for nb in range(2)] for mb in range(3)]
    CBR, SBR = MCB, MCB + 16
    for cp in range(2):
        for nb in range(2):
            P(f'ds_read_b64_tr_b16 {v(GF[nb][cp], 2)}, {v(vra0)} offset:{cp * GS + 32 * nb}')
            P(f'ds_read_b64_tr_b16 {v(GF[nb][cp] + 2, 2)}, {v(vra1)} offset:{cp * GS + 32 * nb}')
    for mb in range(3):
        for cp in range(2):
            for nb in range(2):
                mfma(P, v(DA[mb][nb], 4), v(CA[mb][cp], 4), v(GF[nb][cp], 4), v(DA[mb][nb], 4) if cp else '0')
    for e in range(2):
        for k in range(2):
            P(f'ds_read_b128 {v(CBR + 8 * e + 4 * k, 4)}, {v(vmr)} offset:{4 * 2560 + 1280 * e + 16 * k}')
            P(f'ds_read_b128 {v(SBR + 8 * e + 4 * k, 4)}, {v(vmr)} offset:{3 * 2560 + 1280 * e + 16 * k}')
    for mb in range(3):
        for nb in range(2):
            d, t = DA[mb][nb], TW[mb][nb]
            c0 = cv + 4 * nb
            for p in range(2):
                P(f'v_pk_mul_f32 {v(c0 + 2 * p, 2)}, {v(d + 2 * p, 2)}, {v(t + 2 * p, 2)} op_sel_hi:[1,0]')
        for nb in range(2):
            d, t = DA[mb][nb], TW[mb][nb]
            c0 = cv + 4 * nb
            for p in range(2):
                P(f'v_pk_fma_f32 {v(c0 + 2 * p, 2)}, {v(d + 2 * p, 2)}, {v(t + 2 * p, 2)}, {v(c0 + 2 * p, 2)} '
                  f'op_sel:[1,1,0] op_sel_hi:[0,1,1] neg_hi:[1,0,0]')
        for nb in range(2):
            d = DA[mb][nb]
            c0 = cv + 4 * nb
            for p in range(2):
                P(f'v_cvt_pk_bf16_f32 {v(d + p)}, {v(c0 + 2 * p)}, {v(c0 + 2 * p + 1)}')
        for nb in range(2):
            for p in range(2):
                P(f'ds_write_b32 {v(vzw)}, {v(DA[mb][nb] + p)} offset:{(8 * mb + p) * 144 + 64 * nb}')
    stamp(P, 6)
    ZF = [[GF[mb][ks] for ks in range(2)] for mb in range(2)]
    DB = [[CA[mb][nb] for nb in range(2)] for mb in range(2)]
    Y = DA[0][0]
    for ks in range(2):
        for mb in range(2):
            P(f'ds_read_b128 {v(ZF[mb][ks], 4)}, {v(vzr)} offset:{16 * 144 * mb + 64 * ks}')
    XU = TW[0][0]
    assert TW[1][1] == XU + 12
    for e in range(2):
        for k in range(4):
            unpack(P, XU + 8 * e + 2 * k, XU + 8 * e + 2 * k + 1, XR[e] + k)
    for ks in range(2):
        for mb in range(2):
            for nb in range(2):
                mfma(P, v(DB[mb][nb], 4), v(ZF[mb][ks], 4), v(CB[nb][ks], 4), v(DB[mb][nb], 4) if ks else '0')
    for nb in range(2):
        P(f'ds_write_b128 {v(vyw)}, {v(DB[0][nb], 4)} offset:{1280 * nb}')
    P('s_mov_b64 exec, 0xffff')
    for nb in range(2):
        P(f'ds_write_b128 {v(vyw)}, {v(DB[1][nb], 4)} offset:{1280 * nb + 64}')
    P('s_mov_b64 exec, -1')
    for e in range(2):
        for k in range(2):
            P(f'ds_read_b128 {v(Y + 8 * e + 4 * k, 4)}, {v(vyr)} offset:{1280 * e + 16 * k}')
    stamp(P, 7)
    sm, sq = cv + 4, cv + 6
    for k in range(8):
        P(f'v_pk_fma_f32 {v(Y + 2 * k, 2)}, {v(Y + 2 * k, 2)}, {v(GA + 2 * k, 2)}, {v(XU + 2 * k, 2)}')
    P(f'v_pk_add_f32 {v(sm, 2)}, {v(Y, 2)}, {v(Y + 2, 2)}')
    P(f'v_pk_mul_f32 {v(sq, 2)}, {v(Y, 2)}, {v(Y, 2)}')
    P(f'v_pk_fma_f32 {v(sq, 2)}, {v(Y + 2, 2)}, {v(Y + 2, 2)}, {v(sq, 2)}')
    for k in range(2, 8):
        P(f'v_pk_add_f32 {v(sm, 2)}, {v(sm, 2)}, {v(Y + 2 * k, 2)}')
        P(f'v_pk_fma_f32 {v(sq, 2)}, {v(Y + 2 * k, 2)}, {v(Y + 2 * k, 2)}, {v(sq, 2)}')
    P(f'v_cmp_gt_u32 vcc, 40, {v(vl)}')
    P(f'v_add_f32 {v(sm)}, {v(sm)}, {v(sm + 1)}')
    P(f'v_add_f32 {v(sq)}, {v(sq)}, {v(sq + 1)}')
    P(f'v_cndmask_b32 {v(sm)}, 0, {v(sm)}, vcc')
    P(f'v_cndmask_b32 {v(sq)}, 0, {v(sq)}, vcc')
    side = Rec(P)
    for e in range(2):
        for k in range(4):
            y = Y + 8 * e + 2 * k
            side(f'v_cvt_pk_bf16_f32 {v(XR[e] + k)}, {v(y)}, {v(y + 1)}')
    red = Rec(P)
    for ctl in ('row_ror:8', 'row_ror:4', 'row_ror:2', 'row_ror:1'):
        red.q.append(lambda ctl=ctl: (dpp_add(P, sm, sm, sm, ctl), dpp_add(P, sq, sq, sq, ctl)))
    for ctl, row in (('row_bcast:15', 0xa), ('row_bcast:31', 0xc)):
        red.q.append(lambda ctl=ctl, row=row: (dpp_add(P, sm, sm, sm, ctl, row=row), dpp_add(P, sq, sq, sq, ctl, row=row)))
    side.q.pop(0)()
    side.q.pop(0)()
    weave(P, red.q, side.q, 1)
    P(f'v_readlane_b32 s{T0}, {v(sm)}, 63')
    P(f'v_readlane_b32 s{T1}, {v(sq)}, 63')
    P(f's_mul_i32 s{TD}, s{TT}, 1280')
    P(f's_add_u32 s{TD}, s{TD}, {X1_OFF}')
    P(f'v_mov_b32 {v(sm)}, s{T0}')
    P(f'v_mov_b32 {v(sq)}, s{T1}')
    for e in range(2):
        P(f'buffer_store_dwordx4 {v(XR[e], 4)}, {v(vx)}, {s(WS, 4)}, s{TD} offen offset:{640 * e}{WT}')
    ln_finish(P, [(sm, sq)], 640, [cv])
    for k in range(8):
        P(f'v_pk_fma_f32 {v(Y + 2 * k, 2)}, {v(Y + 2 * k, 2)}, {v(sq, 2)}, {v(sm, 2)} op_sel_hi:[1,0,0]')
    for k in range(8):
        P(f'v_pk_fma_f32 {v(Y + 2 * k, 2)}, {v(Y + 2 * k, 2)}, {v(CBR + 2 * k, 2)}, {v(SBR + 2 * k, 2)}')
    for k in range(8):
        P(f'v_cvt_pk_bf16_f32 {v(GA + k)}, {v(Y + 2 * k)}, {v(Y + 2 * k + 1)}')
    P(f's_lshr_b32 s{T0}, s{TT}, 4')
    P(f's_mul_i32 s{T0}, s{T0}, 20480')
    P(f's_and_b32 s{T1}, s{TT}, 15')
    P(f's_lshl4_add_u32 s{T0}, s{T1}, s{T0}')
    P(f's_add_u32 s{T0}, s{T0}, {H2_OFF}')
    P(f's_add_u32 s{T1}, s{T0}, {40 * 256}')
    P(f'v_lshlrev_b32 {v(vt)}, 8, {v(vl)}')
    P(f'v_mov_b32 {v(vu)}, {OOB:#x}')
    P(f'v_cndmask_b32 {v(vt)}, {v(vu)}, {v(vt)}, vcc')
    P(f'buffer_store_dwordx4 {v(GA, 4)}, {v(vt)}, {s(WS, 4)}, s{T0} offen')
    P(f'buffer_store_dwordx4 {v(GA + 4, 4)}, {v(vt)}, {s(WS, 4)}, s{T1} offen')
    stamp(P, 8)
    endpgm(P, 9)
    P.label('kb_done')
    P('s_endpgm')
    return P


KW_LDS = 143360
GC0 = -2.0 * LOG2E * 0.7978845608028654
GC1 = GC0 * 0.044715


def gelu_group(P, xs, tmp, sc1, vc0):
    ts = [tmp + 2 * i for i in range(len(xs))]
    for x, t in zip(xs, ts):
        P(f'v_pk_mul_f32 {v(t, 2)}, {v(x, 2)}, {v(x, 2)}')
    for x, t in zip(xs, ts):
        P(f'v_pk_fma_f32 {v(t, 2)}, {v(t, 2)}, {s(sc1, 2)}, {v(vc0, 2)}')
    for x, t in zip(xs, ts):
        P(f'v_pk_mul_f32 {v(t, 2)}, {v(t, 2)}, {v(x, 2)}')
    for x, t in zip(xs, ts):
        P(f'v_exp_f32 {v(t)}, {v(t)}')
        P(f'v_exp_f32 {v(t + 1)}, {v(t + 1)}')
    for x, t in zip(xs, ts):
        P(f'v_pk_add_f32 {v(t, 2)}, {v(t, 2)}, 1.0 op_sel_hi:[1,0]')
    for x, t in zip(xs, ts):
        P(f'v_rcp_f32 {v(t)}, {v(t)}')
        P(f'v_rcp_f32 {v(t + 1)}, {v(t + 1)}')
    for x, t in zip(xs, ts):
        P(f'v_pk_mul_f32 {v(x, 2)}, {v(x, 2)}, {v(t, 2)}')


KS_RB = 12
KS_A = KS_RB * 7168
KG_LDS = KS_A + 4 * 16384
KO_RS = 336
SPIN = 20000


def gen_kg():
    P = Prog('kg_kernel')
    WS, BS, SP, MS = 4, 8, 12, 16
    W, W10, RW, JT, PAR, J, H, T0, T1, T2, AO, GO, CNT, LA, SAO, UO, RB, XO = range(20, 38)
    C1, M1, XM = 38, 40, 42
    P('s_cmp_ge_u32 s2, 256')
    P('s_cbranch_scc1 kg_done')
    stamp(P, 0)
    srd(P, WS, KA_WS, WS_END)
    srd(P, SP, KA_WSP, S * 4096)
    C = Alloc(1, 256)
    vl, vl16, vl8, vt, vu, vb, vb2, vh, vg = [C.get() for _ in range(9)]
    vsrc = [C.get() for _ in range(4)]
    var = [C.get() for _ in range(4)]
    BASE = C.n

    def ldsb(E, dst, off):
        E(f'ds_read_b128 {v(dst, 4)}, {v((vl16, vb, vb2)[off >> 16])} offset:{off & 65535}')

    def tile_srd(E, reg, size):
        E(f's_add_u32 s{BS}, s{WS}, s{reg}\ns_addc_u32 s{BS + 1}, s{WS + 1}, 0')
        E(f's_mov_b32 s{BS + 2}, {size}')

    def spin(name, load, test):
        P(f's_mov_b32 s{CNT}, 0')
        test()
        P(f's_cbranch_scc1 {name}_ok')
        P.label(f'{name}_again')
        P(f's_sleep {SLEEP}')
        load()
        P(f's_add_u32 s{CNT}, s{CNT}, 1')
        test()
        P(f's_cbranch_scc1 {name}_ok')
        P(f's_cmp_lt_u32 s{CNT}, {SPIN}')
        P(f's_cbranch_scc1 {name}_again')
        P.label(f'{name}_ok')

    def no_sentinel(regs):
        def test():
            r = list(regs)
            if len(r) == 1:
                P(f'v_cmp_eq_u32 vcc, -1, {v(r[0])}')
            else:
                first = r.pop(0)
                while r:
                    if len(r) >= 2:
                        P(f'v_max3_u32 {v(vt)}, {v(first)}, {v(r.pop(0))}, {v(r.pop(0))}')
                    else:
                        P(f'v_max_u32 {v(vt)}, {v(first)}, {v(r.pop(0))}')
                    first = vt
                P(f'v_cmp_eq_u32 vcc, -1, {v(vt)}')
            P('s_cmp_eq_u64 vcc, 0')
        return test

    A = Alloc(BASE, 256)
    va1, vgr, vx8 = [A.get() for _ in range(3)]
    vc0 = A.get(2)
    acc2 = [[A.get(4) for b in range(4)] for mb in range(2)]
    acc1 = [[A.get(4) for b in range(4)] for mb in range(2)]
    Bf = [[A.get(4) for b in range(7)] for _ in range(2)]
    tmp = A.get(8)
    pk = [A.get(4) for _ in range(8)]
    stt = A.get(16)
    GR = A.get(16)
    Af = [[(ks * 2 + mb) * 4 for ks in range(20)] for mb in range(2)]
    P(f'v_readfirstlane_b32 s{W}, v0')
    P(f'v_and_b32 {v(vl)}, 63, v0')
    P(f'v_lshlrev_b32 {v(vl16)}, 4, {v(vl)}')
    P(f'v_add_u32 {v(va1)}, 20480, {v(vl16)}')
    P(f's_and_b32 s{T0}, s2, 3')
    P(f's_bfe_u32 s{T1}, s2, 0x20003')
    P(f's_lshl2_add_u32 s{T2}, s{T0}, s{T1}')
    P(f's_bfe_u32 s{H}, s2, 0x10002')
    P(f's_lshr_b32 s{J}, s2, 5')
    P(f's_lshl3_add_u32 s{JT}, s{H}, s{J}')
    P(f's_lshr_b32 s{W}, s{W}, 6')
    P(f's_mul_i32 s{T0}, s{JT}, 143360')
    P(f's_add_u32 s{T0}, s{T0}, {WIN_OFF}')
    P(f's_lshl2_add_u32 s{RW}, s{T2}, s{W}')
    P(f's_mul_i32 s{AO}, s{RW}, 40960')
    P(f's_add_u32 s{AO}, s{AO}, {H2_OFF}')
    P(f's_lshl_b32 s{W10}, s{W}, 10')
    P(f's_mov_b32 m0, s{W10}')
    tile_srd(P, T0, 143360)
    P(f's_mov_b32 s{BS + 3}, 0x20000')
    nb = [0]

    def dma_upto(E, n, tag):
        while nb[0] < n:
            i = nb[0]
            if i:
                E('s_add_u32 m0, m0, 4096')
            E(f'buffer_load_dwordx4 {v(vl16)}, {s(BS, 4)}, m0 offen lds', tw=[f'{tag}{i}'])
            nb[0] += 1

    def issueW(E, ks):
        dma_upto(E, (7 * (ks + 1) + 3) // 4, 'W')
        for mb in range(2):
            E(f'buffer_load_dwordx4 {a(Af[mb][ks], 4)}, {v((vl16, va1)[mb])}, {s(WS, 4)}, s{AO} offen offset:{1024 * (ks % 4)}')
        if ks % 4 == 3:
            E(f's_add_u32 s{AO}, s{AO}, 4096')

    LEAD = KW_LEAD
    for ks in range(LEAD):
        issueW(P, ks)
    stamp(P, 1)
    P(f's_and_b32 s{PAR}, s{JT}, 1')
    P(f's_mov_b32 s{C1}, {fl(GC1)}')
    P(f's_mov_b32 s{C1 + 1}, {fl(GC1)}')
    P(f'v_mov_b32 {v(vc0)}, {fl(GC0)}')
    P(f'v_mov_b32 {v(vc0 + 1)}, {fl(GC0)}')
    P(f'v_add_u32 {v(vb)}, 65536, {v(vl16)}')
    P(f'v_add_u32 {v(vb2)}, 131072, {v(vl16)}')
    P(f'v_lshlrev_b32 {v(vl8)}, 3, {v(vl)}')
    P(f'v_and_b32 {v(vx8)}, 255, {v(vl8)}')
    P(f's_lshl_b32 s{T0}, s{PAR}, 3')
    P(f's_lshl_b32 s{XM}, 0x00ff00ff, s{T0}')
    P(f's_mov_b32 s{XM + 1}, s{XM}')
    P(f's_mov_b32 s{M1}, 0xaaaaaaaa')
    P(f's_mov_b32 s{M1 + 1}, 0xaaaaaaaa')
    P(f'v_and_b32 {v(vh)}, 15, v0')
    P(f'v_bfe_u32 {v(vg)}, v0, 4, 2')
    P(f'v_bfe_u32 {v(vt)}, v0, 3, 1')
    P(f'v_lshl_add_u32 {v(vt)}, {v(vt)}, 2, {v(vg)}')
    P(f'v_bfe_u32 {v(vu)}, v0, 2, 1')
    P(f'v_lshl_add_u32 {v(vt)}, {v(vt)}, 1, {v(vu)}')
    P(f'v_and_b32 {v(vu)}, 1, v0')
    P(f'v_lshl_add_u32 {v(vt)}, {v(vt)}, 1, {v(vu)}')
    P(f'v_lshlrev_b32 {v(vgr)}, 7, {v(vt)}')
    P(f's_lshl_b32 s{GO}, s{RW}, 12')
    P(f's_add_u32 s{GO}, s{GO}, {GRAN_OFF}')
    P(f'v_lshrrev_b32 {v(vt)}, 3, {v(vl)}')
    P(f'v_and_b32 {v(vu)}, 7, v0')
    P(f'v_xor_b32 {v(vu)}, {v(vu)}, {v(vg)}')
    P(f'v_lshlrev_b32 {v(vt)}, 12, {v(vt)}')
    P(f'v_lshl_add_u32 {v(vsrc[0])}, {v(vu)}, 4, {v(vt)}')
    P(f'v_xor_b32 {v(vt)}, 64, {v(vsrc[0])}')
    P(f'v_add_u32 {v(vsrc[1])}, {32768 - 1024}, {v(vt)}')
    P(f'v_add_u32 {v(vsrc[2])}, {2 * (32768 - 1024)}, {v(vsrc[0])}')
    P(f'v_add_u32 {v(vsrc[3])}, {3 * (32768 - 1024)}, {v(vt)}')
    P(f's_lshl_b32 s{SAO}, s{RW}, 17')
    P(f's_lshl_b32 s{T1}, s{H}, 11')
    P(f's_add_u32 s{SAO}, s{SAO}, s{T1}')
    P(f's_lshl_b32 s{LA}, s{W}, 14')
    P(f's_add_u32 s{LA}, s{LA}, {KS_A}')
    P(f'v_bfe_u32 {v(vt)}, v0, 1, 3')
    P(f'v_lshrrev_b32 {v(vu)}, 1, {v(vg)}')
    P(f'v_xor_b32 {v(vt)}, {v(vt)}, {v(vu)}')
    P(f'v_lshlrev_b32 {v(vt)}, 4, {v(vt)}')
    P(f'v_lshl_add_u32 {v(vt)}, {v(vh)}, 7, {v(vt)}')
    P(f'v_and_b32 {v(vu)}, 1, {v(vg)}')
    P(f'v_lshl_add_u32 {v(vt)}, {v(vu)}, 3, {v(vt)}')
    P(f'v_add_u32 {v(var[0])}, s{LA}, {v(vt)}')
    for c in range(1, 4):
        P(f'v_xor_b32 {v(var[c])}, {32 * c}, {v(var[0])}')

    def syncW(ks):
        P.need(*[f'W{i}' for i in range((7 * (ks + 1) + 3) // 4)])
        P('s_barrier')

    syncW(0)
    for b in range(7):
        ldsb(P, Bf[0][b], b * 1024)
    stamp(P, 2)
    for ks in range(20):
        side = Rec(P)
        if ks + 1 < 20:
            if ks % KW_SYNC == 0:
                syncW(min(ks + KW_SYNC, 19))
            P('s_waitcnt lgkmcnt(0)')
            for b in range(7):
                ldsb(side, Bf[(ks + 1) & 1][b], ((ks + 1) * 7 + b) * 1024)
        if ks + LEAD < 20:
            issueW(side, ks + LEAD)
        main = []
        for b in range(4):
            for mb in range(2):
                main.append(lambda b=b, mb=mb: mfma(P, v(acc2[mb][b], 4), a(Af[mb][ks], 4), v(Bf[ks & 1][b], 4),
                                                    v(acc2[mb][b], 4) if ks else '0'))
        for b in range(4):
            for mb in range(2):
                main.append(lambda b=b, mb=mb: mfma(P, v(acc1[mb][b], 4), v(Bf[ks & 1][(4, 5, 6, 3)[b]], 4), a(Af[mb][ks], 4),
                                                    v(acc1[mb][b], 4) if ks else '0'))
        weave(P, main, side.q, 1)
        for o in side.q:
            o()
    stamp(P, 3)

    def issueA(E, st):
        for i in range(4):
            pre = f's_add_u32 m0, s{LA}, {(st % 4) * 4096}\n' if i == 0 else ''
            post = f'\ns_add_u32 s{SAO}, s{SAO}, 128' if i == 3 else ''
            E(pre + f'buffer_load_dwordx4 {v(vsrc[i])}, {s(SP, 4)}, s{SAO} offen offset:{1024 * i} lds' + post, tw=[f'A{st}'])

    P('s_barrier')
    pre = Rec(P)
    for st in range(KS_LEAD // 2):
        issueA(pre, st)
    V = Rec(P)
    for b in range(4):
        xs = [acc2[0][b], acc2[0][b] + 2, acc2[1][b], acc2[1][b] + 2]
        gelu_group(V, xs, tmp, C1, vc0)
        if b == 3:
            for x in xs:
                for e in range(2):
                    V(f'v_cndmask_b32 {v(x + e)}, 0, {v(x + e)}, {s(XM, 2)}')
        for k, x in enumerate(xs):
            sm, sq = stt + 2 * k, stt + 8 + 2 * k
            if b == 0:
                V(f'v_pk_mul_f32 {v(sq, 2)}, {v(x, 2)}, {v(x, 2)}')
            else:
                y = [acc2[0][0], acc2[0][0] + 2, acc2[1][0], acc2[1][0] + 2][k] if b == 1 else sm
                V(f'v_pk_add_f32 {v(sm, 2)}, {v(x, 2)}, {v(y, 2)}')
                V(f'v_pk_fma_f32 {v(sq, 2)}, {v(x, 2)}, {v(x, 2)}, {v(sq, 2)}')
    for base in (stt, stt + 8):
        for k in range(4):
            dpp_add(V, base + k, base + k, base + k, 'row_ror:8', bank=0x3)
    for base in (stt, stt + 8):
        for k in range(4):
            dpp_add(V, base + k, base + 4 + k, base + 4 + k, 'row_ror:8', bank=0xc)
    for base in (stt, stt + 8):
        for k in range(2):
            dpp_add(V, base + k, base + k, base + k, 'row_half_mirror', bank=0x5)
    for base in (stt, stt + 8):
        for k in range(2):
            dpp_add(V, base + k, base + 2 + k, base + 2 + k, 'row_half_mirror', bank=0xa)
    for ctl in ('quad_perm:[2,3,0,1]', 'quad_perm:[1,0,3,2]'):
        for base in (stt, stt + 8):
            for k in range(2):
                dpp_add(V, base + k, base + k, base + k, ctl)
    V(f'v_cndmask_b32 {v(stt)}, {v(stt)}, {v(stt + 1)}, {s(M1, 2)}')
    V(f'v_cndmask_b32 {v(stt + 1)}, {v(stt + 8)}, {v(stt + 9)}, {s(M1, 2)}')
    V(f'v_and_b32 {v(stt)}, -2, {v(stt)}')
    V(f'v_and_b32 {v(stt + 1)}, -2, {v(stt + 1)}')
    V(f's_lshl3_add_u32 s{T0}, s{JT}, s{GO}')
    V(f'buffer_store_dwordx2 {v(stt, 2)}, {v(vgr)}, {s(WS, 4)}, s{T0} offen sc0 sc1')
    weave(P, list(pre.q), V.q, 12)
    for o in V.q:
        o()
    stamp(P, 4)

    def poll_gran():
        P(f'v_lshlrev_b32 {v(vt)}, 2, {v(vl16)}')
        for k in range(4):
            P(f'buffer_load_dwordx4 {v(GR + 4 * k, 4)}, {v(vt)}, {s(WS, 4)}, s{GO} offen offset:{16 * k} sc0 sc1')

    P(f's_mul_i32 s{T0}, s{RW}, {2 * 112 * 256}')
    P(f's_lshr_b32 s{T1}, s{JT}, 1')
    P(f's_mul_i32 s{T1}, s{T1}, {14 * 256}')
    P(f's_add_u32 s{T0}, s{T0}, s{T1}')
    P(f's_add_u32 s{T0}, s{T0}, {Z1_OFF}')
    P(f's_lshl_b32 s{T1}, s{PAR}, 10')
    P(f's_add_u32 s{AO}, s{T0}, s{T1}')
    P(f's_lshl_b32 s{T1}, s{PAR}, 9')
    P(f's_add_u32 s{T1}, s{T0}, s{T1}')
    P(f's_lshl_b32 s{T2}, s{PAR}, 8')
    P(f's_add_u32 s{T0}, s{T0}, s{T2}')
    for tb in range(2):
        xs = [acc1[tb][0], acc1[tb][0] + 2, acc1[tb][1], acc1[tb][1] + 2]
        gelu_group(P, xs, tmp, C1, vc0)
        for k, x in enumerate(xs):
            P(f'v_cvt_pk_bf16_f32 {v(pk[2 * tb] + k)}, {v(x)}, {v(x + 1)}')
        P(f'buffer_store_dwordx4 {v(pk[2 * tb], 4)}, {v(vl16)}, {s(WS, 4)}, s{AO} offen sc1', tw=['Z'])
        if tb == 1:
            poll_gran()
        xs = [acc1[tb][2], acc1[tb][2] + 2, acc1[tb][3], acc1[tb][3] + 2]
        gelu_group(P, xs, tmp, C1, vc0)
        for k, x in enumerate(xs):
            P(f'v_cvt_pk_bf16_f32 {v(pk[2 * tb + 1] + k)}, {v(x)}, {v(x + 1)}')
        P(f'buffer_store_dwordx2 {v(pk[2 * tb + 1], 2)}, {v(vl8)}, {s(WS, 4)}, s{T1} offen offset:2048 sc1', tw=['Z'])
        P(f's_sub_u32 exec_lo, 0, s{PAR}')
        P(f's_sub_u32 exec_hi, s{PAR}, 1')
        P(f'buffer_store_dwordx2 {v(pk[2 * tb + 1] + 2, 2)}, {v(vx8)}, {s(WS, 4)}, s{T0} offen offset:3072 sc1', tw=['Z'])
        P('s_mov_b64 exec, -1')
        if tb == 0:
            for r in (AO, T1, T0):
                P(f's_add_u32 s{r}, s{r}, {112 * 256}')
    stamp(P, 5)
    spin('kg_g', poll_gran, no_sentinel(range(GR, GR + 16)))
    stamp(P, 6)
    for st_ in (4, 2, 1):
        for k in range(st_):
            P(f'v_pk_add_f32 {v(GR + 2 * k, 2)}, {v(GR + 2 * k, 2)}, {v(GR + 2 * (k + st_), 2)}')
    dpp_add(P, GR, GR, GR, 'quad_perm:[1,0,3,2]')
    dpp_add(P, GR + 1, GR + 1, GR + 1, 'quad_perm:[1,0,3,2]')
    ln_finish(P, [(GR, GR + 1)], FH, [tmp])
    P(f's_lshl_b32 s{T0}, s{W}, 8')
    P(f'v_bfe_u32 {v(vt)}, v0, 1, 5')
    P(f'v_lshl_add_u32 {v(vt)}, {v(vt)}, 2, s{T0}')
    P(f'ds_write_b32 {v(vt)}, {v(GR)}')
    P(f'ds_write_b32 {v(vt)}, {v(GR + 1)} offset:128')
    P(f'v_lshl_add_u32 {v(vt)}, {v(vg)}, 4, s{T0}')
    for mb in range(2):
        P(f'ds_read_b128 {v(stt + 4 * mb, 4)}, {v(vt)} offset:{64 * mb}')
        P(f'ds_read_b128 {v(stt + 8 + 4 * mb, 4)}, {v(vt)} offset:{128 + 64 * mb}')
    P(f's_lshr_b32 s{T0}, s{JT}, 1')
    P(f's_lshl_b32 s{T0}, s{T0}, 6')
    P(f's_add_u32 s{T2}, s{T0}, s{RW}')
    P(f's_mul_i32 s{T0}, s{T2}, 7168')
    P(f's_add_u32 s{T0}, s{T0}, {Z2_OFF}')
    P(f's_lshl_b32 s{T1}, s{PAR}, 11')
    P(f's_add_u32 s{AO}, s{T0}, s{T1}')
    P(f's_lshl_b32 s{T1}, s{PAR}, 10')
    P(f's_add_u32 s{T1}, s{T0}, s{T1}')
    P(f's_add_u32 s{T1}, s{T1}, 4096')
    P(f's_add_u32 s{T0}, s{T0}, 6144')
    for b in range(4):
        xs = [acc2[0][b], acc2[0][b] + 2, acc2[1][b], acc2[1][b] + 2]
        for k, x in enumerate(xs):
            P(f'v_pk_fma_f32 {v(x, 2)}, {v(x, 2)}, {v(stt + 8 + 2 * k, 2)}, {v(stt + 2 * k, 2)}')
        for k, x in enumerate(xs):
            P(f'v_cvt_pk_bf16_f32 {v(pk[4 + b] + k)}, {v(x)}, {v(x + 1)}')
        if b < 2:
            P(f'buffer_store_dwordx4 {v(pk[4 + b], 4)}, {v(vl16)}, {s(WS, 4)}, s{AO} offen offset:{1024 * b} sc1', tw=['Z'])
        elif b == 2:
            P(f'buffer_store_dwordx4 {v(pk[4 + b], 4)}, {v(vl16)}, {s(WS, 4)}, s{T1} offen sc1', tw=['Z'])
        else:
            P(f's_mov_b64 exec, {s(XM, 2)}')
            P(f'buffer_store_dwordx4 {v(pk[4 + b], 4)}, {v(vl16)}, {s(WS, 4)}, s{T0} offen sc1', tw=['Z'])
            P('s_mov_b64 exec, -1')
    stamp(P, 7)

    def handoff(name, tok, nlane, wr_off, rd_off, FL, st, between=None):
        def lanes():
            P(f's_mov_b32 exec_lo, {(1 << nlane) - 1:#x}' if nlane < 32 else 's_mov_b32 exec_lo, -1')
            P('s_mov_b32 exec_hi, 0')

        P(f'v_mov_b32 {v(FL)}, 0')
        P(f'v_lshlrev_b32 {v(vt)}, 7, {v(vl)}')
        P(f'v_lshlrev_b32 {v(vu)}, 2, {v(vl)}')
        P.need(tok)
        P('s_barrier')
        stamp(P, st)
        P(f's_cmp_lg_u32 s{W}, 0')
        P(f's_cbranch_scc1 {name}_sent')
        lanes()
        P(f'buffer_store_dword {v(FL)}, {v(vt)}, {s(WS, 4)}, s{wr_off} offen{FLAGM}')
        P('s_mov_b64 exec, -1')
        P.label(f'{name}_sent')
        if between:
            between()
        P(f's_cmp_lg_u32 s{W}, 0')
        P(f's_cbranch_scc1 {name}_ok')
        lanes()

        def poll():
            P(f'buffer_load_dword {v(FL + 1)}, {v(vu)}, {s(WS, 4)}, s{rd_off} offen{FLAGM}')

        poll()
        spin(name, poll, no_sentinel([FL + 1]))
        P('s_mov_b64 exec, -1')
        P('s_barrier')

    A = Alloc(BASE, 256)
    FL = A.get(2)
    accS = [[A.get(4) for b in range(7)] for mb in range(2)]
    BfS = [[A.get(4) for b in range(7)] for _ in range(2)]
    AfS = [[A.get(4) for mb in range(2)] for _ in range(2)]
    Z1 = [A.get(16) for _ in range(2)]
    OUT = [A.get(12) for _ in range(2)]
    OX = A.get(4)
    vbs = [A.get(2) for _ in range(2)]
    tmp = A.get(8)
    vxo = A.get()
    P(f's_lshr_b32 s{T0}, s{JT}, 1')
    P(f's_lshl_b32 s{T0}, s{T0}, 12')
    P(f's_lshr_b32 s{T1}, s{RW}, 2')
    P(f's_lshl1_add_u32 s{T2}, s{T1}, s{PAR}')
    P(f's_lshl2_add_u32 s{T2}, s{T2}, s{T0}')
    P(f's_add_u32 s{T2}, s{T2}, {FL1_OFF}')
    P(f's_lshl4_add_u32 s{GO}, s{J}, s{T1}')
    P(f's_lshl1_add_u32 s{GO}, s{GO}, s{H}')
    P(f's_lshl_b32 s{GO}, s{GO}, 7')
    P(f's_add_u32 s{GO}, s{GO}, {FL1_OFF}')
    srd(P, MS, KA_BSP, 4096)
    P(f's_lshl1_add_u32 s{T0}, s{J}, s{H}')
    P(f's_mul_i32 s{T0}, s{T0}, {32 * 7168}')
    P(f's_add_u32 s{T0}, s{T0}, {Z2_OFF}')
    tile_srd(P, T0, KS_A)
    P(f's_mul_i32 s{UO}, s{RW}, {2 * 112 * 256}')
    P(f's_mul_i32 s{T1}, s{J}, {14 * 256}')
    P(f's_add_u32 s{UO}, s{UO}, s{T1}')
    P('s_waitcnt lgkmcnt(0)')
    handoff('kg_f', 'Z', 32, T2, GO, FL, 8)
    stamp(P, 9)
    nb[0] = 0

    def issueB(E, k):
        while nb[0] < (7 * (k + 1) + 3) // 4:
            i = nb[0]
            if i and (4096 * i) % KS_A == 0:
                E(f's_add_u32 s{BS}, s{BS}, {KS_A}\ns_addc_u32 s{BS + 1}, s{BS + 1}, 0')
            E(f's_add_u32 m0, s{W10}, {(4096 * i) % KS_A}')
            E(f'buffer_load_dwordx4 {v(vl16)}, {s(BS, 4)}, m0 offen sc1 lds', tw=[f'B{i}'])
            nb[0] += 1

    LEAD = KS_LEAD
    for k in range(LEAD):
        issueB(P, k)

    def syncS(k):
        P.need(*[f'A{q}' for q in range((k >> 1) + 1)], *[f'B{i}' for i in range((7 * (k + 1) + 3) // 4)])
        P('s_barrier')

    def readsS(E, k):
        for mb in range(2):
            for e in range(2):
                E(f'ds_read_b64 {v(AfS[k & 1][mb] + 2 * e, 2)}, {v(var[2 * (k & 1) + e])} offset:{((k >> 1) % 4) * 4096 + 2048 * mb}')
        for b in range(7):
            ldsb(E, BfS[k & 1][b], (k % KS_RB) * 7168 + 1024 * b)

    syncS(0)
    readsS(P, 0)
    stamp(P, 10)
    for k in range(32):
        if k == 16:
            stamp(P, 11)
        side = Rec(P)
        if k + 1 < 32:
            if k % KS_SYNC == 0:
                syncS(min(k + KS_SYNC, 31))
            P('s_waitcnt lgkmcnt(0)')
            readsS(side, k + 1)
        if k + LEAD < 32:
            if (k + LEAD) % 2 == 0:
                issueA(side, (k + LEAD) // 2)
            issueB(side, k + LEAD)
        if k == 32 - LEAD:
            side(f's_lshl_b32 s{T1}, s{RW}, 6')
            side(f'v_lshlrev_b32 {v(vt)}, 1, {v(vh)}')
            for tb in range(2):
                side(f'buffer_load_ushort {v(vbs[tb])}, {v(vt)}, {s(MS, 4)}, s{T1} offen offset:{32 * tb}')
            side(f's_add_u32 s{T0}, s{UO}, {Z1_OFF}')
        if 0 <= k - (33 - LEAD) < 2:
            tb = k - (33 - LEAD)
            for jj in range(2):
                side(f'buffer_load_dwordx4 {v(Z1[tb] + 4 * jj, 4)}, {v(vl16)}, {s(WS, 4)}, s{T0} offen offset:{1024 * jj} sc1')
            for jj in range(3):
                side(f'buffer_load_dwordx2 {v(Z1[tb] + 8 + 2 * jj, 2)}, {v(vl8)}, {s(WS, 4)}, s{T0} offen offset:{2048 + 512 * jj} sc1')
            side(f's_add_u32 s{T0}, s{T0}, {112 * 256}')
        main = [lambda b=b, mb=mb: mfma(P, v(accS[mb][b], 4), v(BfS[k & 1][b], 4), v(AfS[k & 1][mb], 4),
                                        v(accS[mb][b], 4) if k else '0') for b in range(7) for mb in range(2)]
        weave(P, main, side.q, 2)
        for o in side.q:
            o()
    stamp(P, 12)
    P(f's_bfe_u32 s{T0}, s2, 0x10002')
    P(f's_lshr_b32 s{T1}, s2, 6')
    P(f's_lshl2_add_u32 s{JT}, s{T0}, s{T1}')
    P(f's_mul_i32 s{T0}, s{JT}, 143360')
    P(f's_add_u32 s{T0}, s{T0}, {WOUT_OFF}')
    tile_srd(P, T0, 143360)
    P(f's_mov_b32 m0, s{W10}')
    P(f's_mul_i32 s{T0}, s{H}, {U_HALF}')
    P(f's_add_u32 s{UO}, s{UO}, s{T0}')
    P(f's_add_u32 s{UO}, s{UO}, {U_OFF}')
    P(f's_add_u32 s{T1}, s{UO}, {112 * 256}')
    P(f's_sub_u32 s{T0}, s{H}, 1')
    P(f'v_lshrrev_b32 {v(vt)}, 1, {v(vg)}')
    P(f'v_lshl_add_u32 {v(vt)}, {v(vt)}, 4, {v(vh)}')
    P(f'v_and_b32 {v(vu)}, 1, {v(vg)}')
    P(f'v_mul_u32_u24 {v(vu)}, {112 * 256}, {v(vu)}')
    P(f'v_lshl_add_u32 {v(vxo)}, {v(vt)}, 4, {v(vu)}')
    for tb in range(2):
        P(f'v_lshlrev_b32 {v(vbs[tb])}, 16, {v(vbs[tb])}')
        P(f'v_and_b32 {v(vbs[tb])}, s{T0}, {v(vbs[tb])}')
    P('s_barrier')
    nb[0] = 0
    pre = Rec(P)
    for i in range(35):
        one = Rec(P)
        dma_upto(one, i + 1, 'O')
        pre.q.append(lambda q=one.q: [o() for o in q])
    V = Rec(P)
    for b, tb in [(6, 0), (6, 1)] + [(b, tb) for tb in range(2) for b in range(6)]:
        dst = OX + 2 * tb if b == 6 else OUT[tb] + 2 * b
        for h in range(2):
            x = accS[tb][b] + 2 * h
            t = tmp + 4 * (b & 1 ^ tb) + 2 * h
            unpack(V, t, t + 1, Z1[tb] + 2 * b + h)
            V(f'v_pk_add_f32 {v(x, 2)}, {v(x, 2)}, {v(vbs[tb], 2)} op_sel_hi:[1,0]')
        for h in range(2):
            x = accS[tb][b] + 2 * h
            t = tmp + 4 * (b & 1 ^ tb) + 2 * h
            V(f'v_pk_mul_f32 {v(x, 2)}, {v(x, 2)}, {v(t, 2)}')
        for h in range(2):
            x = accS[tb][b] + 2 * h
            V(f'v_cvt_pk_bf16_f32 {v(dst + h)}, {v(x)}, {v(x + 1)}')
        if b == 0 and tb == 0:
            for h in range(2):
                V(f'v_permlane16_swap_b32 {v(OX + h)}, {v(OX + 2 + h)}')
            V(f'buffer_store_dwordx4 {v(OX, 4)}, {v(vxo)}, {s(WS, 4)}, s{UO} offen offset:3072 sc1', tw=['U'])
        if b < 6 and b & 1:
            V(f'buffer_store_dwordx4 {v(OUT[tb] + 2 * b - 2, 4)}, {v(vl16)}, {s(WS, 4)}, s{(UO, T1)[tb]} offen offset:{512 * (b - 1)} sc1', tw=['U'])
    npre = KO_PRE
    weave(P, pre.q[:npre], V.q, len(V.q) // npre + 1)
    for o in V.q:
        o()
    stamp(P, 13)
    A = Alloc(BASE, 256)
    FL = A.get(2)
    vu1, vw, vr, vo, vo2, vgb = [A.get() for _ in range(6)]
    accO = [[A.get(4) for nb_ in range(5)] for h in range(2)]
    BfO = [[A.get(4) for nb_ in range(5)] for _ in range(2)]
    GB = A.get(8)
    X1 = [A.get(4) for _ in range(3)]
    RD = [A.get(8) for _ in range(3)]
    tmp = A.get(8)
    Uf = [[(ks * 2 + h) * 4 for h in range(2)] for ks in range(28)]
    for o in pre.q[npre:npre + KO_PRE2]:
        o()
    P(f's_lshl1_add_u32 s{T2}, s{J}, s{H}')
    P(f's_lshr_b32 s{T0}, s{RW}, 2')
    P(f's_lshl_b32 s{T0}, s{T0}, 11')
    P(f's_lshl2_add_u32 s{T2}, s{T2}, s{T0}')
    P(f's_add_u32 s{T2}, s{T2}, {FL2_OFF}')
    srd(P, MS, KA_OUT, S * 1280)
    P(f's_and_b32 s{T0}, s2, 3')
    P(f's_bfe_u32 s{T1}, s2, 0x30003')
    P(f's_lshl3_add_u32 s{T0}, s{T0}, s{T1}')
    P(f's_lshl2_add_u32 s{RB}, s{T0}, s{W}')
    P(f's_lshl3_add_u32 s{GO}, s{T0}, s{JT}')
    P(f's_lshl_b32 s{GO}, s{GO}, 7')
    P(f's_add_u32 s{GO}, s{GO}, {FL2_OFF}')
    assert all((t * 6554) >> 16 == t // 10 for t in range(64))
    P(f'v_add_u32 {v(vu1)}, {U_HALF}, {v(vl16)}')
    P(f's_mul_i32 s{UO}, s{RB}, {112 * 256}')
    P(f's_add_u32 s{UO}, s{UO}, {U_OFF}')
    P(f'v_mul_u32_u24 {v(vt)}, 6554, {v(vl)}')
    P(f'v_lshrrev_b32 {v(vt)}, 16, {v(vt)}')
    P(f'v_mul_u32_u24 {v(vgb)}, 10, {v(vt)}')
    P(f'v_sub_u32 {v(vgb)}, {v(vl)}, {v(vgb)}')
    P(f's_mul_i32 s{T0}, s{W}, {16 * KO_RS}')
    P(f'v_mul_u32_u24 {v(vr)}, {KO_RS}, {v(vt)}')
    P(f'v_lshl_add_u32 {v(vr)}, {v(vgb)}, 5, {v(vr)}')
    P(f'v_add_u32 {v(vr)}, s{T0}, {v(vr)}')
    P(f'v_mul_u32_u24 {v(vo)}, 1280, {v(vt)}')
    P(f'v_lshl_add_u32 {v(vo)}, {v(vgb)}, 4, {v(vo)}')
    P(f'v_lshlrev_b32 {v(vgb)}, 5, {v(vgb)}')
    P(f'v_mov_b32 {v(vt)}, {OOB:#x}')
    P(f'v_cmp_gt_u32 vcc, 40, {v(vl)}')
    P(f'v_cndmask_b32 {v(vo2)}, {v(vt)}, {v(vo)}, vcc')
    P(f'v_cmp_gt_u32 vcc, 60, {v(vl)}')
    P(f'v_cndmask_b32 {v(vo)}, {v(vt)}, {v(vo)}, vcc')
    P(f'v_mul_u32_u24 {v(vw)}, {KO_RS}, {v(vh)}')
    P(f'v_lshl_add_u32 {v(vw)}, {v(vg)}, 4, {v(vw)}')
    P(f'v_add_u32 {v(vw)}, s{T0}, {v(vw)}')
    P(f's_mul_i32 s{XO}, s{RB}, {16 * 1280}')
    P(f's_mul_i32 s{T0}, s{JT}, 160')
    P(f's_add_u32 s{XO}, s{XO}, s{T0}')
    P(f's_lshl_b32 s{T0}, s{T0}, 1')
    P(f's_add_u32 s{T0}, s{T0}, {MOD_OFF + 5 * 2560}')
    P(f's_add_u32 s{T1}, s{XO}, {X1_OFF}')
    P('s_waitcnt lgkmcnt(0)')
    handoff('kg_u', 'U', 16, T2, GO, FL, 14, lambda: [o() for o in pre.q[npre + KO_PRE2:]])
    stamp(P, 15)

    def issueU(E, ks):
        for h in range(2):
            E(f'buffer_load_dwordx4 {a(Uf[ks][h], 4)}, {v((vl16, vu1)[h])}, {s(WS, 4)}, s{UO} offen offset:{1024 * (ks % 4)} sc1')
        if ks % 4 == 3:
            E(f's_add_u32 s{UO}, s{UO}, 4096')

    LEAD = KO_LEAD
    for ks in range(LEAD):
        issueU(P, ks)
    P.need(*[f'O{i}' for i in range(35)])
    P('s_barrier')

    def readsO(E, ks):
        for nb_ in range(5):
            ldsb(E, BfO[ks & 1][nb_], (ks * 5 + nb_) * 1024)

    readsO(P, 0)
    stamp(P, 16)
    for ks in range(28):
        side = Rec(P)
        if ks + 1 < 28:
            P('s_waitcnt lgkmcnt(0)')
            readsO(side, ks + 1)
        if ks + LEAD < 28:
            issueU(side, ks + LEAD)
        if ks == 28 - LEAD:
            for k in range(2):
                side(f'buffer_load_dwordx4 {v(GB + 4 * k, 4)}, {v(vgb)}, {s(WS, 4)}, s{T0} offen offset:{16 * k}')
            for r in range(3):
                side(f'buffer_load_dwordx4 {v(X1[r], 4)}, {v(vo if r < 2 else vo2)}, {s(WS, 4)}, s{T1} offen')
                if r < 2:
                    side(f's_add_u32 s{T1}, s{T1}, {6 * 1280}')
        if ks == 8:
            P('s_barrier')
        main = [lambda nb_=nb_, h=h: mfma(P, v(accO[h][nb_], 4), v(BfO[ks & 1][nb_], 4), a(Uf[ks][h], 4),
                                          v(accO[h][nb_], 4) if ks else '0') for nb_ in range(5) for h in range(2)]
        weave(P, main, side.q, 1)
        for o in side.q:
            o()
    stamp(P, 17)
    for nb_ in range(5):
        for h in range(2):
            P(f'v_pk_add_f32 {v(accO[0][nb_] + 2 * h, 2)}, {v(accO[0][nb_] + 2 * h, 2)}, {v(accO[1][nb_] + 2 * h, 2)}')
        P(f'ds_write_b128 {v(vw)}, {v(accO[0][nb_], 4)} offset:{64 * nb_}')
    for r in range(3):
        for k in range(2):
            P(f'ds_read_b128 {v(RD[r] + 4 * k, 4)}, {v(vr)} offset:{r * 6 * KO_RS + 16 * k}')
    for r in range(3):
        for k in range(4):
            unpack(P, tmp + 2 * k, tmp + 2 * k + 1, X1[r] + k)
        for k in range(4):
            P(f'v_pk_fma_f32 {v(RD[r] + 2 * k, 2)}, {v(RD[r] + 2 * k, 2)}, {v(GB + 2 * k, 2)}, {v(tmp + 2 * k, 2)}')
        for k in range(4):
            P(f'v_cvt_pk_bf16_f32 {v(X1[r] + k)}, {v(RD[r] + 2 * k)}, {v(RD[r] + 2 * k + 1)}')
        P(f'buffer_store_dwordx4 {v(X1[r], 4)}, {v(vo if r < 2 else vo2)}, {s(MS, 4)}, s{XO} offen{WTO}')
        if r < 2:
            P(f's_add_u32 s{XO}, s{XO}, {6 * 1280}')
    stamp(P, 18)
    endpgm(P, 19)
    P.label('kg_done')
    P('s_endpgm')
    return P


PREFETCH = True
WTO = ' sc1'
FLAGM = ' sc0 sc1'
SLEEP = 2
KW_LEAD, KW_SYNC, KS_LEAD, KS_SYNC, KO_LEAD, KO_PRE, KO_PRE2 = 5, 2, 6, 2, 10, 8, 10


def build(path):
    ks = [(gen_ka(), KA_GRID, 512, KA_LDS), (gen_kb(), 256, 512, KB_LDS), (gen_kg(), 256, 256, KG_LDS)]
    out = HEADER
    for P, g, b, l in ks:
        out += f'; @launch kernel={P.name} grid=({g},1,1) block=({b},1,1) lds={l}\n'
    out += '.amdgcn_target "amdgcn-amd-amdhsa--gfx950"\n.text\n'
    for P, g, b, l in ks:
        P.finish()
        out += P.text()
        print(P.name, 'instrs', len(P.items), 'regs', P.maxregs(), file=sys.stderr)
    out += '.p2align 8\n.type ctab,@object\nctab:\n'
    t = tables()
    for i in range(0, len(t), 8):
        out += '.long ' + ','.join('0x%x' % x for x in t[i:i + 8]) + '\n'
    out += f'.size ctab, {CT_SIZE}\ncode_end:\n'
    out += '.section .rodata,"a"\n'
    for P, g, b, l in ks:
        out += P.descriptor()
    open(path, 'w').write(out)


if __name__ == '__main__':
    PROF = '--prof' in sys.argv
    for arg in sys.argv[1:]:
        if '=' in arg:
            k_, v_ = arg.split('=')
            globals()[k_] = int(v_) if v_.lstrip('-').isdigit() else v_.replace('_', ' ')
    paths = [x for x in sys.argv[1:] if x.endswith('.s')]
    build(paths[0] if paths else 'cdna_kernels/' + NAME + '.s')
```

```python
from asmlib import *
from layout import *
NAME='adaLN_cond__spectral_fnet__mixer_gmlp__prompt'
base = open('cdna_kernels/'+NAME+'.s').read()
def add(P, grid, block, fn):
    line = f'; @launch kernel={P.name} grid=({grid},1,1) block=({block},1,1) lds=0\n'
    i0 = base.index('; @launch')
    s = base[:i0] + line + base[i0:]
    s = s.replace('.text\n', '.text\n' + P.text(), 1) + P.descriptor()
    open('cdna_kernels/' + fn, 'w').write(s)
bufs = [(KA_WS, WS_END), (KA_WSP, 2048*4096), (KA_X, 2048*1280), (KA_WIN, 640*3456), (KA_WOUT, 864*1280), (KA_WMOD, 640*7680), (KA_OUT, 2048*1280)]
def touch(shift, nwg):
    P = Prog('xt_kernel')
    P(f's_cmp_ge_u32 s2, {nwg}\ns_cbranch_scc1 xt_done')
    for i, (ka, sz) in enumerate(bufs):
        R = 4 + 4 * i
        P(f's_load_dwordx2 s[{R}:{R+1}], s[0:1], {ka}\ns_mov_b32 s{R+2}, {sz}\ns_mov_b32 s{R+3}, 0x20000')
    P(f'v_lshlrev_b32 v1, {shift}, v0')
    for i, (ka, sz) in enumerate(bufs):
        R = 4 + 4 * i
        P(f'buffer_load_dword v{2+i}, v1, s[{R}:{R+3}], 0 offen')
    P('s_waitcnt vmcnt(0)')
    P.label('xt_done'); P('s_endpgm'); P.finish(); return P
def readall():
    P = Prog('xt_kernel')
    P(f's_cmp_ge_u32 s2, 256\ns_cbranch_scc1 xt_done')
    sel = bufs[1:6]
    for i, (ka, sz) in enumerate(sel):
        R = 4 + 4 * i
        P(f's_load_dwordx2 s[{R}:{R+1}], s[0:1], {ka}\ns_mov_b32 s{R+2}, {sz}\ns_mov_b32 s{R+3}, 0x20000')
    P('s_lshl_b32 s3, s2, 8\nv_add_u32 v1, s3, v0\nv_lshlrev_b32 v1, 7, v1')
    for i, (ka, sz) in enumerate(sel):
        R = 4 + 4 * i
        P(f'buffer_load_dword v{2+i}, v1, s[{R}:{R+3}], 0 offen')
    P('s_waitcnt vmcnt(0)')
    P.label('xt_done'); P('s_endpgm'); P.finish(); return P
add(touch(16, 8), 8, 512, 'var1.s')
add(touch(16, 256), 256, 512, 'var2.s')
add(readall(), 256, 256, 'var3.s')
P = Prog('xt_kernel'); P('v_mov_b32 v1, 0\ns_endpgm'); add(P, 256, 256, 'var4.s')
```

```python
import math
import struct

S, D, FH = 2048, 640, 864
T_BLK = 81920


def al(x, a=4096):
    return (x + a - 1) // a * a


T_OFF = 0
MOD_OFF = al(T_OFF + 32 * T_BLK)
GRAN_OFF = al(MOD_OFF + 15360)
FL1_OFF = GRAN_OFF + 2048 * 128
FL2_OFF = FL1_OFF + 32768
FL0_OFF = FL2_OFF + 32768
WIN_OFF = al(FL0_OFF + 32768)
WOUT_OFF = al(WIN_OFF + 16 * 143360)
H2_OFF = al(WOUT_OFF + 8 * 28 * 5 * 1024)
X1_OFF = al(H2_OFF + 128 * 20 * 1024)
Z1_OFF = al(X1_OFF + 2048 * 1280)
Z2_OFF = al(Z1_OFF + 128 * 112 * 256)
U_OFF = al(Z2_OFF + 8 * 64 * 7 * 1024)
U_HALF = 128 * 112 * 256
WS_END = al(U_OFF + 2 * U_HALF)

KA_X, KA_WIN, KA_WSP, KA_BSP, KA_WOUT, KA_C, KA_WMOD, KA_OUT, KA_DBG, KA_WS = 0, 48, 56, 64, 72, 80, 88, 96, 104, 112


def bf16_bits(x):
    u = struct.unpack('<I', struct.pack('<f', x))[0]
    return ((u + 0x7FFF + ((u >> 16) & 1)) >> 16) & 0xFFFF


def cosr(num, den):
    num %= den
    if 4 * num == den or 4 * num == 3 * den:
        return 0.0
    return math.cos(2 * math.pi * num / den)


def frag(fn):
    out = []
    for l in range(64):
        vals = [bf16_bits(fn(l & 15, l >> 4, q)) for q in range(8)]
        out += [vals[2 * k] | (vals[2 * k + 1] << 16) for k in range(4)]
    return out


def f32w(x):
    return struct.unpack('<I', struct.pack('<f', x))[0]


def tables():
    t = []
    for mb in range(3):
        for cp in range(2):
            def fn(m, g, q):
                e2, cpp = 8 * mb + (m >> 1), m & 1
                d2 = 16 * (q >> 2) + 4 * g + (q & 3)
                if e2 >= 20 or d2 >= 20:
                    return 0.0
                return cosr(e2 * d2 + 5 * (cpp - cp), 20)
            t += frag(fn)
    for nb in range(2):
        for ks in range(2):
            def fn(n, g, q):
                e1 = 16 * nb + n
                d1 = 16 * ks + 4 * g + (q >> 1)
                return cosr(e1 * d1 - 8 * (q & 1), 32)
            t += frag(fn)
    for mb in range(3):
        for nb in range(2):
            for l in range(64):
                d1 = 16 * nb + (l & 15)
                for p in range(2):
                    e2 = 8 * mb + 2 * (l >> 4) + p
                    t += [f32w(cosr(e2 * d1, 640)), f32w(cosr(e2 * d1 - 160, 640))]
    for nb in range(4):
        for ks in range(2):
            def fn(n, g, q):
                o = 16 * nb + n
                t2, c = o & 31, o >> 5
                if o == 32:
                    t2, c = 32, 0
                s2 = 32 * ks + 16 * (q >> 2) + 4 * g + (q & 3)
                return cosr(t2 * s2 + 16 * c, 64)
            t += frag(fn)
    return t


CT_CA, CT_CB, CT_TW, CT_FA, CT_SIZE = 0, 6144, 10240, 16384, 24576


def blockcol(b, n):
    return 16 * b + n if b < 3 else 48 + (n & 7)


def piece_col(fp):
    if fp < 64:
        return fp >> 5, 16 * ((fp >> 2) & 1) + 4 * ((fp >> 3) & 3) + (fp & 3)
    if fp < 96:
        return (fp >> 2) & 1, 32 + 4 * ((fp >> 3) & 3) + (fp & 3)
    return (fp >> 3) & 1, 48 + (fp & 7)


def tile_start(jt):
    return 216 * (jt >> 2) + 56 * (jt & 3)


Z2_SLOT = [[0, 1, 4, 6], [2, 3, 5, 6]]
```

```python
import sys
from asmlib import *
from layout import *

OOB = 0x80000000
NAME = 'adaLN_cond__spectral_fnet__mixer_gmlp__prompt'
HEADER = open('cdna_kernels/' + NAME + '.s.ref').read().split('; Override launch')[0]
LOG2E = 1.4426950408889634


def srd(P, R, kaoff, size):
    P(f's_load_dwordx2 {s(R, 2)}, s[0:1], {kaoff}')
    P(f's_mov_b32 {s(R + 2)}, {size}')
    P(f's_mov_b32 {s(R + 3)}, 0x20000')


def pcsrd(P, R, sym, size, back=False):
    lab = P.newlabel('pc')
    P(f's_getpc_b64 {s(R, 2)}')
    P.label(lab)
    if back:
        P(f's_sub_u32 {s(R)}, {s(R)}, {lab}-{sym}')
        P(f's_subb_u32 {s(R + 1)}, {s(R + 1)}, 0')
    else:
        P(f's_add_u32 {s(R)}, {s(R)}, {sym}-{lab}')
        P(f's_addc_u32 {s(R + 1)}, {s(R + 1)}, 0')
    P(f's_mov_b32 {s(R + 2)}, {size}')
    P(f's_mov_b32 {s(R + 3)}, 0x20000')


def code_prefetch(P, R, vtmp, vdst, first, last, nthreads, nloads, guard=True, back=False):
    skip = P.newlabel('nopf')
    if guard:
        P('s_cmp_ge_u32 s2, 8')
        P(f's_cbranch_scc1 {skip}')
    pcsrd(P, R, first, f'{last}-{first}', back)
    P(f'v_lshlrev_b32 {v(vtmp)}, 6, v0')
    for i in range(nloads):
        if i:
            P(f'v_add_u32 {v(vtmp)}, {nthreads * 64}, {v(vtmp)}')
        P(f'buffer_load_dword {v(vdst + i)}, {v(vtmp)}, {s(R, 4)}, 0 offen')
    P.label(skip)


PROF = False
EXP = 0
RT = 0
WT = ' sc1'
PROF_OFF = WS_END
PROF_KID = {'ka_kernel': 0, 'kb_kernel': 1, 'kg_kernel': 2}
SB = 44


def stamp(P, i):
    if PROF:
        P(f'{"s_memrealtime" if RT else "s_memtime"} {s(SB + 4 + 2 * i, 2)}')
        if i == 0:
            P(f's_memrealtime {s(SB, 2)}')


def endpgm(P, n=0, ws=4):
    if PROF and n:
        P('s_waitcnt vmcnt(0)')
        stamp(P, n)
        P(f's_memrealtime {s(SB + 2, 2)}')
        P('s_waitcnt lgkmcnt(0)')
        P(f's_mov_b32 s{ws + 2}, {PROF_OFF + (5 << 20)}')
        P('v_lshrrev_b32 v1, 6, v0')
        P(f's_lshl_b32 s{SB + 1}, s2, 3')
        P(f'v_add_u32 v1, s{SB + 1}, v1')
        P('v_lshlrev_b32 v1, 7, v1')
        P(f's_mov_b32 s{SB + 1}, {PROF_OFF + (PROF_KID[P.name] << 20)}')
        P('s_mov_b64 exec, 1')
        P(f's_getreg_b32 s{SB + 3}, hwreg(HW_REG_XCC_ID)')
        P(f'v_mov_b32 v2, s{SB + 3}')
        P(f'buffer_store_dword v2, v1, {s(ws, 4)}, s{SB + 1} offen offset:124')
        regs = [SB, SB + 2] + [SB + 4 + 2 * i for i in range(n + 1)]
        for k, r in enumerate(regs):
            P(f'v_mov_b32 v2, s{r}')
            P(f'buffer_store_dword v2, v1, {s(ws, 4)}, s{SB + 1} offen offset:{4 * k}')
    P('s_endpgm')


def mfma(P, d, x, y, c):
    P(f'v_mfma_f32_16x16x32_bf16 {d}, {x}, {y}, {c}')


def unpack(P, lo, hi, src):
    P(f'v_lshlrev_b32 {v(lo)}, 16, {v(src)}')
    P(f'v_and_b32 {v(hi)}, 0xffff0000, {v(src)}')


def dpp_add(P, d, x, y, ctl, row=0xf, bank=0xf):
    P(f'v_add_f32_dpp {v(d)}, {v(x)}, {v(y)} {ctl} row_mask:{row:#x} bank_mask:{bank:#x}')


def ln_finish(P, pairs, n, tmps):
    for (sm, sq), t in zip(pairs, tmps):
        P(f'v_mul_f32 {v(sm)}, {fl(-1.0 / n)}, {v(sm)}')
        P(f'v_mul_f32 {v(sq)}, {fl(1.0 / n)}, {v(sq)}')
    for (sm, sq), t in zip(pairs, tmps):
        P(f'v_fma_f32 {v(sq)}, -{v(sm)}, {v(sm)}, {v(sq)}')
    for (sm, sq), t in zip(pairs, tmps):
        P(f'v_max_f32 {v(sq)}, 0, {v(sq)}')
    for (sm, sq), t in zip(pairs, tmps):
        P(f'v_add_f32 {v(sq)}, {fl(1e-5)}, {v(sq)}')
    for (sm, sq), t in zip(pairs, tmps):
        P(f'v_rsq_f32 {v(sq)}, {v(sq)}')
    for (sm, sq), t in zip(pairs, tmps):
        P(f'v_mul_f32 {v(sm)}, {v(sm)}, {v(sq)}')


KA_PF, KA_FT, KA_GV, KA_WO, KA_END, KA_GRID = 0, 8, 168, 228, 256, 256
KA_LDS = 32 * 1296


def gen_ka():
    P = Prog('ka_kernel')
    WS, SRC, TB = 4, 8, 12
    T0, T1, T2, T3 = 18, 19, 20, 21
    stamp(P, 0)
    srd(P, WS, KA_WS, WS_END)
    P(f's_sub_u32 s{T0}, s2, {KA_FT}')
    P(f's_cmp_ge_u32 s{T0}, {KA_GV - KA_FT}')
    P('s_cbranch_scc1 ka_other')

    srd(P, SRC, KA_X, S * 1280)
    S1, CS = 16, 17
    P(f's_lshr_b32 s{T1}, s{T0}, 3')
    P(f's_and_b32 s{S1}, s{T0}, 7')
    P(f's_and_b32 s{T2}, s{T1}, 3')
    P(f's_lshl3_add_u32 s{S1}, s{T2}, s{S1}')
    P(f's_lshr_b32 s{CS}, s{T1}, 2')
    A = Alloc(1, 128)
    vj, vrow, vc, vt, vu = [A.get() for _ in range(5)]
    addr = [A.get() for _ in range(5)]
    X = [[A.get(4) for _ in range(5)] for _ in range(2)]
    FA = [A.get(4) for _ in range(2)]
    st = [A.get() for _ in range(4)]
    one = A.get()
    tmp = [A.get() for _ in range(4)]
    Dm = [A.get(4) for _ in range(4)]
    PK = A.get(8)
    P(f'v_and_b32 {v(vj)}, 15, v0')
    P(f'v_lshrrev_b32 {v(vrow)}, 4, v0')
    P(f's_mul_i32 s{T0}, s{S1}, 1280')
    P(f's_lshl_b32 s{T2}, s{CS}, 8')
    P(f'v_lshl_add_u32 {v(vc)}, {v(vj)}, 4, s{T2}')
    P(f'v_mul_u32_u24 {v(vt)}, 40960, {v(vrow)}')
    P(f's_add_u32 s{T1}, s{T0}, {32 * 40960}')
    for i in range(5):
        r = addr[i]
        if i:
            P(f'v_add_u32 {v(r)}, {(256 * i - 1280) & 0xffffffff:#x}, {v(vc)}')
            P(f'v_add_u32 {v(vu)}, {256 * i}, {v(vc)}')
            P(f'v_min_u32 {v(r)}, {v(r)}, {v(vu)}')
        P(f'v_add_u32 {v(r)}, {v(r if i else vc)}, {v(vt)}')
        P(f'buffer_load_dwordx4 {v(X[0][i], 4)}, {v(r)}, {s(SRC, 4)}, s{T0} offen')
    for i in range(5):
        P(f'buffer_load_dwordx4 {v(X[1][i], 4)}, {v(addr[i])}, {s(SRC, 4)}, s{T1} offen')
    pcsrd(P, TB, f'ctab+{CT_FA}', 8192)
    P(f'v_and_b32 {v(vu)}, 63, v0')
    P(f'v_bfe_u32 {v(vt)}, v0, 6, 2')
    P(f'v_lshlrev_b32 {v(vu)}, 4, {v(vu)}')
    P(f'v_lshl_add_u32 {v(vu)}, {v(vt)}, 11, {v(vu)}')
    for ks in range(2):
        P(f'buffer_load_dwordx4 {v(FA[ks], 4)}, {v(vu)}, {s(TB, 4)}, 0 offen offset:{1024 * ks}')
    stamp(P, 1)
    P(f'v_mov_b32 {v(one)}, 0x3f803f80')
    for r in st:
        P(f'v_mov_b32 {v(r)}, 0')
    XR, SC, SR = 264, 64 * 264, 144
    vw, vr, vs, vsw, vsr = addr
    P(f'v_mul_u32_u24 {v(vw)}, {XR}, {v(vrow)}')
    P(f'v_lshl_add_u32 {v(vw)}, {v(vj)}, 4, {v(vw)}')
    P(f'v_bfe_u32 {v(vr)}, v0, 2, 4')
    P(f'v_mul_u32_u24 {v(vr)}, {XR}, {v(vr)}')
    P(f'v_and_b32 {v(vt)}, 3, v0')
    P(f'v_lshl_add_u32 {v(vr)}, {v(vt)}, 5, {v(vr)}')
    P(f'v_lshrrev_b32 {v(vt)}, 8, v0')
    P(f'v_lshl_add_u32 {v(vr)}, {v(vt)}, 7, {v(vr)}')
    P(f'v_lshrrev_b32 {v(vu)}, 6, v0')
    P(f'v_mul_u32_u24 {v(vu)}, {16 * SR}, {v(vu)}')
    P(f'v_add_u32 {v(vu)}, {SC}, {v(vu)}')
    P(f'v_mul_u32_u24 {v(vsw)}, {SR}, {v(vj)}')
    P(f'v_bfe_u32 {v(vc)}, v0, 4, 2')
    P(f'v_lshl_add_u32 {v(vsw)}, {v(vc)}, 5, {v(vsw)}')
    P(f'v_add_u32 {v(vsw)}, {v(vsw)}, {v(vu)}')
    P(f'v_bfe_u32 {v(vc)}, v0, 3, 3')
    P(f'v_mul_u32_u24 {v(vsr)}, {SR}, {v(vc)}')
    P(f'v_and_b32 {v(vj)}, 7, v0')
    P(f'v_lshl_add_u32 {v(vsr)}, {v(vj)}, 4, {v(vsr)}')
    P(f'v_add_u32 {v(vsr)}, {v(vsr)}, {v(vu)}')
    P(f'v_lshl_add_u32 {v(vj)}, {v(vt)}, 3, {v(vj)}')
    P(f's_and_b32 s{T0}, s{S1}, 7')
    P(f's_lshl_b32 s{T0}, s{T0}, 1')
    P(f'v_xor_b32 {v(vj)}, s{T0}, {v(vj)}')
    P(f'v_bfe_u32 {v(vt)}, v0, 6, 1')
    P(f'v_lshl_add_u32 {v(vs)}, {v(vt)}, 4, {v(vc)}')
    P(f'v_mul_u32_u24 {v(vs)}, {T_BLK}, {v(vs)}')
    P(f'v_lshl_add_u32 {v(vs)}, {v(vj)}, 4, {v(vs)}')
    P(f'v_bfe_u32 {v(vt)}, v0, 7, 1')
    P(f'v_lshl_add_u32 {v(vs)}, {v(vt)}, 13, {v(vs)}')
    P(f's_lshl_b32 s{T0}, s{CS}, 14')
    P(f's_lshl_b32 s{T1}, s{S1}, 8')
    P(f's_add_u32 s{T0}, s{T0}, s{T1}')
    if T_OFF:
        P(f's_add_u32 s{T0}, s{T0}, {T_OFF}')
    P(f's_add_u32 s{T1}, s{T0}, {8 * T_BLK}')
    for q in range(2):
        for i in range(5):
            for k in range(4):
                P(f'v_dot2c_f32_bf16 {v(st[2 * q])}, {v(X[q][i] + k)}, {v(one)}')
                P(f'v_dot2c_f32_bf16 {v(st[2 * q + 1])}, {v(X[q][i] + k)}, {v(X[q][i] + k)}')
    for ctl in ('row_ror:8', 'row_ror:4', 'row_ror:2', 'row_ror:1'):
        for r in st:
            dpp_add(P, r, r, r, ctl)
    ln_finish(P, [(st[0], st[1]), (st[2], st[3])], 640, tmp)
    for q in range(2):
        for k in range(4):
            x = X[q][0] + k
            lo, hi = tmp[2 * (k & 1)], tmp[2 * (k & 1) + 1]
            unpack(P, lo, hi, x)
            P(f'v_fma_f32 {v(lo)}, {v(lo)}, {v(st[2 * q + 1])}, {v(st[2 * q])}')
            P(f'v_fma_f32 {v(hi)}, {v(hi)}, {v(st[2 * q + 1])}, {v(st[2 * q])}')
            P(f'v_cvt_pk_bf16_f32 {v(x)}, {v(lo)}, {v(hi)}')
        for e in range(2):
            P(f'ds_write_b64 {v(vw)}, {v(X[q][0] + 2 * e, 2)} offset:{32 * XR * q + 8 * e}', tw=['xn'])
    stamp(P, 2)
    P.need('xn')
    P('s_barrier')
    stamp(P, 3)
    for ks in range(2):
        for b in range(4):
            for h in range(2):
                P(f'ds_read_b64_tr_b16 {v(X[ks][b + 1] + 2 * h, 2)}, {v(vr)} offset:{(32 * ks + 16 * h) * XR + 8 * b}')
    for ks in range(2):
        for b in range(4):
            mfma(P, v(Dm[b], 4), v(X[ks][b + 1], 4), v(FA[ks], 4), v(Dm[b], 4) if ks else '0')
    for b in range(4):
        P(f'v_cvt_pk_bf16_f32 {v(PK + 2 * b)}, {v(Dm[b])}, {v(Dm[b] + 1)}')
        P(f'v_cvt_pk_bf16_f32 {v(PK + 2 * b + 1)}, {v(Dm[b] + 2)}, {v(Dm[b] + 3)}')
        if b & 1:
            P(f'ds_write_b128 {v(vsw)}, {v(PK + 2 * b - 2, 4)} offset:{8 * (b - 1)}')
    for e in range(2):
        P(f'ds_read_b128 {v(X[0][e], 4)}, {v(vsr)} offset:{8 * SR * e}')
    for e in range(2):
        P(f'buffer_store_dwordx4 {v(X[0][e], 4)}, {v(vs)}, {s(WS, 4)}, s{(T0, T1)[e]} offen{WT}')
    endpgm(P, 4)
    P.label('ka_done')
    P('s_endpgm')

    P.label('ka_other')
    P(f's_cmp_ge_u32 s2, {KA_WO}')
    P('s_cbranch_scc1 ka_wo')
    P(f's_cmp_ge_u32 s2, {KA_GV}')
    P('s_cbranch_scc1 ka_gv')
    if True:
        code_prefetch(P, SRC, 1, 8, 'kb_kernel', f'ctab+{CT_FA}', 512, 1, guard=False)
    P('v_lshlrev_b32 v2, 4, v0')
    for k in range(4):
        P(f'v_mov_b32 v{4 + k}, -1')
    P(f's_lshl_b32 s{T0}, s2, 15')
    P(f's_add_u32 s{T0}, s{T0}, {GRAN_OFF - (KA_PF << 15)}')
    for k in range(4):
        P(f'buffer_store_dwordx4 v[4:7], v2, {s(WS, 4)}, s{T0} offen{WT}')
        if k < 3:
            P(f's_add_u32 s{T0}, s{T0}, 8192')
    P(f's_mul_i32 s{T0}, s2, 12288')
    P(f's_add_u32 s{T0}, s{T0}, {FL1_OFF}')
    P(f'buffer_store_dwordx4 v[4:7], v2, {s(WS, 4)}, s{T0} offen{WT}')
    P(f's_add_u32 s{T0}, s{T0}, 4096')
    P(f'buffer_store_dwordx4 v[4:7], v2, {s(WS, 4)}, s{T0} offen{WT}')
    stamp(P, 1)
    stamp(P, 2)
    stamp(P, 3)
    endpgm(P, 4)

    P.label('ka_gv')
    GI = 16
    P(f'v_readfirstlane_b32 s{T1}, v0')
    P(f's_sub_u32 s{GI}, s2, {KA_GV}')
    srd(P, SRC, KA_WMOD, 640 * 7680)
    srd(P, TB, KA_C, 1280)
    A = Alloc(1, 128)
    vrs, vo, vc = A.get(), A.get(), A.get()
    C4 = A.get(4)
    C1 = A.get()
    W = [A.get(4) for _ in range(10)]
    acc = A.get(8)
    sv = A.get(10)
    ev = A.get(10)
    pk = A.get(5)
    tt = A.get(2)
    P(f'v_lshrrev_b32 {v(vrs)}, 3, v0')
    P(f'v_mul_u32_u24 {v(vc)}, 20, {v(vrs)}')
    P(f'v_mul_u32_u24 {v(vo)}, 76800, {v(vrs)}')
    P(f'v_and_b32 {v(tt)}, 7, v0')
    P(f'v_lshl_add_u32 {v(vo)}, {v(tt)}, 4, {v(vo)}')
    P(f's_lshl_b32 s{T0}, s{GI}, 7')

    P(f'buffer_load_dwordx4 {v(C4, 4)}, {v(vc)}, {s(TB, 4)}, 0 offen')
    P(f'buffer_load_dword {v(C1)}, {v(vc)}, {s(TB, 4)}, 0 offen offset:16')
    for i in range(10):
        P(f'buffer_load_dwordx4 {v(W[i], 4)}, {v(vo)}, {s(SRC, 4)}, s{T0} offen')
        if i < 9:
            P(f's_add_u32 s{T0}, s{T0}, 7680')
    stamp(P, 1)
    for k in range(8):
        P(f'v_mov_b32 {v(acc + k)}, 0')
    P(f's_mov_b32 s{T2}, 0x05040100')
    P(f's_mov_b32 s{T3}, 0x07060302')
    for p in range(5):
        unpack(P, sv + 2 * p, sv + 2 * p + 1, C4 + p if p < 4 else C1)
    for k in range(10):
        P(f'v_mul_f32 {v(ev + k)}, {fl(-LOG2E)}, {v(sv + k)}')
    for k in range(10):
        P(f'v_exp_f32 {v(ev + k)}, {v(ev + k)}')
    for k in range(10):
        P(f'v_add_f32 {v(ev + k)}, 1.0, {v(ev + k)}')
    for k in range(10):
        P(f'v_rcp_f32 {v(ev + k)}, {v(ev + k)}')
    for k in range(10):
        P(f'v_mul_f32 {v(sv + k)}, {v(sv + k)}, {v(ev + k)}')
    for p in range(5):
        P(f'v_cvt_pk_bf16_f32 {v(pk + p)}, {v(sv + 2 * p)}, {v(sv + 2 * p + 1)}')
    for p in range(5):
        for k in range(4):
            P(f'v_perm_b32 {v(ev + 2 * k)}, {v(W[2 * p + 1] + k)}, {v(W[2 * p] + k)}, s{T2}')
            P(f'v_perm_b32 {v(ev + 2 * k + 1)}, {v(W[2 * p + 1] + k)}, {v(W[2 * p] + k)}, s{T3}')
        for k in range(8):
            P(f'v_dot2c_f32_bf16 {v(acc + k)}, {v(ev + k)}, {v(pk + p)}')
    for k in range(4):
        P(f'v_permlane32_swap_b32 {v(acc + k)}, {v(acc + k + 4)}')
    for k in range(4):
        P(f'v_add_f32 {v(acc + k)}, {v(acc + k)}, {v(acc + k + 4)}')
    for k in range(2):
        P(f'v_permlane16_swap_b32 {v(acc + k)}, {v(acc + k + 2)}')
    for k in range(2):
        P(f'v_add_f32 {v(acc + k)}, {v(acc + k)}, {v(acc + k + 2)}')
    dpp_add(P, acc, acc, acc, 'row_ror:8', bank=0x3)
    dpp_add(P, acc, acc + 1, acc + 1, 'row_ror:8', bank=0xc)
    P(f'v_bfe_u32 {v(vo)}, v0, 5, 1')
    P(f'v_lshl_add_u32 {v(vo)}, {v(tt)}, 1, {v(vo)}')
    P(f'v_bfe_u32 {v(vc)}, v0, 4, 1')
    P(f'v_lshl_add_u32 {v(vo)}, {v(vo)}, 1, {v(vc)}')
    P(f'v_bfe_u32 {v(vc)}, v0, 3, 1')
    P(f'v_lshl_add_u32 {v(vo)}, {v(vo)}, 1, {v(vc)}')
    P(f'v_lshrrev_b32 {v(vc)}, 6, v0')
    P(f'v_lshlrev_b32 {v(vc)}, 2, {v(vc)}')
    P(f'v_lshl_add_u32 {v(vo)}, {v(vo)}, 5, {v(vc)}')
    P(f'ds_write_b32 {v(vo)}, {v(acc)}', tw=['part'])
    P(f'v_lshlrev_b32 {v(vo)}, 5, v0')
    stamp(P, 2)
    P.need('part')
    P('s_barrier')
    stamp(P, 3)
    P(f's_cmp_ge_u32 s{T1}, 64')
    P('s_cbranch_scc1 ka_done')
    P(f'ds_read_b128 {v(W[0], 4)}, {v(vo)}')
    P(f'ds_read_b128 {v(W[1], 4)}, {v(vo)} offset:16')
    for k in range(4):
        P(f'v_add_f32 {v(W[0] + k)}, {v(W[0] + k)}, {v(W[1] + k)}')
    P(f'v_add_f32 {v(W[0])}, {v(W[0])}, {v(W[0] + 1)}')
    P(f'v_add_f32 {v(W[0] + 2)}, {v(W[0] + 2)}, {v(W[0] + 3)}')
    P(f'v_add_f32 {v(W[0])}, {v(W[0])}, {v(W[0] + 2)}')
    P(f'v_cvt_pk_bf16_f32 {v(W[0])}, {v(W[0])}, {v(W[0])}')
    P(f'v_and_b32 {v(W[0])}, 0xffff0000, {v(W[0])}')
    P(f's_mov_b32 s{T1}, 0')
    P(f's_sub_u32 s{T0}, s{GI}, 10')
    P(f's_cmp_lt_u32 s{T0}, 10')
    P(f's_cselect_b32 s{T1}, 1.0, s{T1}')
    P(f's_sub_u32 s{T0}, s{GI}, 40')
    P(f's_cmp_lt_u32 s{T0}, 10')
    P(f's_cselect_b32 s{T1}, 1.0, s{T1}')
    P(f'v_add_f32 {v(W[0])}, s{T1}, {v(W[0])}')
    P(f'v_cvt_pk_bf16_f32 {v(W[0])}, {v(W[0])}, {v(W[0])}')
    P(f'v_and_b32 {v(W[0])}, 0xffff0000, {v(W[0])}')
    P(f'v_lshlrev_b32 {v(vo)}, 2, v0')
    P(f's_lshl_b32 s{T0}, s{GI}, 8')
    P(f's_add_u32 s{T0}, s{T0}, {MOD_OFF}')
    P(f'buffer_store_dword {v(W[0])}, {v(vo)}, {s(WS, 4)}, s{T0} offen{WT}')
    endpgm(P, 4)

    P.label('ka_wo')
    P(f's_cmp_ge_u32 s2, {KA_END}')
    P('s_cbranch_scc1 ka_done')
    srd(P, SRC, KA_WOUT, 864 * 1280)
    assert all((f * 1171) >> 17 == f // 112 for f in range(896))
    A = Alloc(1, 128)
    vrl, vu, vo, vw, vr, vt, vq, vj2 = [A.get() for _ in range(8)]
    Fr = [A.get(4) for _ in range(5)]
    W = [A.get(4) for _ in range(5)]
    KS = 16
    P(f's_sub_u32 s{KS}, s2, {KA_WO}')
    P(f's_lshl_b32 s{T0}, s{KS}, 5')
    P(f'v_lshrrev_b32 {v(vrl)}, 4, v0')
    P(f'v_add_u32 {v(vo)}, s{T0}, {v(vrl)}')
    P(f'v_mul_u32_u24 {v(vt)}, 1171, {v(vo)}')
    P(f'v_lshrrev_b32 {v(vt)}, 17, {v(vt)}')
    P(f'v_mul_u32_u24 {v(vu)}, 112, {v(vt)}')
    P(f'v_sub_u32 {v(vu)}, {v(vo)}, {v(vu)}')
    P(f'v_lshrrev_b32 {v(vq)}, 1, {v(vt)}')
    P(f'v_lshlrev_b32 {v(vq)}, 3, {v(vq)}')
    P(f'v_sub_u32 {v(vo)}, {v(vo)}, {v(vu)}')
    P(f'v_sub_u32 {v(vo)}, {v(vo)}, {v(vq)}')
    P(f'v_and_b32 {v(vj2)}, 1, {v(vt)}')
    P(f'v_bfe_u32 {v(vt)}, {v(vu)}, 3, 2')
    P(f'v_and_b32 {v(vr)}, 3, {v(vu)}')
    P(f'v_lshl_add_u32 {v(vr)}, {v(vt)}, 2, {v(vr)}')
    P(f'v_bfe_u32 {v(vt)}, {v(vu)}, 2, 1')
    P(f'v_lshrrev_b32 {v(vq)}, 5, {v(vu)}')
    P(f'v_lshl_add_u32 {v(vw)}, {v(vt)}, 4, {v(vr)}')
    P(f'v_cmp_le_u32 vcc, 64, {v(vu)}')
    P(f'v_add_u32 {v(vr)}, 32, {v(vr)}')
    P(f'v_cndmask_b32 {v(vq)}, {v(vq)}, {v(vt)}, vcc')
    P(f'v_cndmask_b32 {v(vw)}, {v(vw)}, {v(vr)}, vcc')
    P(f'v_cmp_le_u32 vcc, 96, {v(vu)}')
    P(f'v_bfe_u32 {v(vt)}, {v(vu)}, 3, 1')
    P(f'v_and_b32 {v(vr)}, 7, {v(vu)}')
    P(f'v_add_u32 {v(vr)}, 48, {v(vr)}')
    P(f'v_cndmask_b32 {v(vq)}, {v(vq)}, {v(vt)}, vcc')
    P(f'v_cndmask_b32 {v(vw)}, {v(vw)}, {v(vr)}, vcc')
    P(f'v_mul_u32_u24 {v(vt)}, 112, {v(vj2)}')
    P(f'v_add_u32 {v(vt)}, {v(vt)}, {v(vu)}')
    P(f'v_cmp_gt_u32 vcc, 216, {v(vt)}')
    P(f'v_mad_u32_u24 {v(vo)}, {v(vq)}, 56, {v(vo)}')
    P(f'v_add_u32 {v(vo)}, {v(vo)}, {v(vw)}')
    P(f'v_mul_u32_u24 {v(vo)}, 1280, {v(vo)}')
    P(f'v_and_b32 {v(vu)}, 15, v0')
    P(f'v_lshl_add_u32 {v(vo)}, {v(vu)}, 4, {v(vo)}')
    P(f'v_mov_b32 {v(vt)}, {OOB:#x}')
    P(f'v_cndmask_b32 {v(vo)}, {v(vt)}, {v(vo)}, vcc')
    for i in range(5):
        P(f'buffer_load_dwordx4 {v(W[i], 4)}, {v(vo)}, {s(SRC, 4)}, 0 offen offset:{256 * i}')
    stamp(P, 1)
    P(f'v_mul_u32_u24 {v(vw)}, 1296, {v(vrl)}')
    P(f'v_lshl_add_u32 {v(vw)}, {v(vu)}, 4, {v(vw)}')
    P(f'v_readfirstlane_b32 s{T1}, v0')
    P(f's_lshr_b32 s{T1}, s{T1}, 6')
    P(f'v_bfe_u32 {v(vr)}, v0, 4, 2')
    P(f'v_bfe_u32 {v(vt)}, v0, 2, 2')
    P(f'v_lshl_add_u32 {v(vr)}, {v(vr)}, 3, {v(vt)}')
    P(f'v_mul_u32_u24 {v(vr)}, 1296, {v(vr)}')
    P(f'v_and_b32 {v(vt)}, 3, v0')
    P(f'v_lshlrev_b32 {v(vt)}, 3, {v(vt)}')
    P(f's_mul_i32 s{T2}, s{T1}, 160')
    P(f'v_add3_u32 {v(vr)}, {v(vr)}, {v(vt)}, s{T2}')
    P(f'v_and_b32 {v(vo)}, 63, v0')
    P(f'v_lshlrev_b32 {v(vo)}, 4, {v(vo)}')
    P(f's_mul_i32 s{T0}, s{T1}, 28')
    P(f's_add_u32 s{T0}, s{T0}, s{KS}')
    P(f's_mul_i32 s{T0}, s{T0}, 5120')
    P(f's_add_u32 s{T0}, s{T0}, {WOUT_OFF}')
    P(f's_add_u32 s{T2}, s{T0}, 4096')
    for i in range(5):
        P(f'ds_write_b128 {v(vw)}, {v(W[i], 4)} offset:{256 * i}', tw=['img2'])
    stamp(P, 2)
    P.need('img2')
    P('s_barrier')
    stamp(P, 3)
    for nb in range(5):
        for h in range(2):
            P(f'ds_read_b64_tr_b16 {v(Fr[nb] + 2 * h, 2)}, {v(vr)} offset:{4 * h * 1296 + 32 * nb}')
    for nb in range(5):
        if nb < 4:
            P(f'buffer_store_dwordx4 {v(Fr[nb], 4)}, {v(vo)}, {s(WS, 4)}, s{T0} offen offset:{1024 * nb}{WT}')
        else:
            P(f'buffer_store_dwordx4 {v(Fr[nb], 4)}, {v(vo)}, {s(WS, 4)}, s{T2} offen{WT}')
    endpgm(P, 4)
    return P


def weave(P, main, side, per):
    for m in main:
        m()
        for _ in range(per):
            if side:
                side.pop(0)()


class Rec:
    def __init__(self, P):
        self.P = P
        self.q = []

    def __call__(self, text, tw=(), tr=()):
        self.q.append(lambda: self.P(text, tw, tr))

    def need(self, *t):
        self.q.append(lambda: self.P.need(*t))


def l2_prefetch(P, R, vaddr, soff, vdst, n, step):
    for e in range(n):
        P(f'buffer_load_dwordx4 {v(vdst + 4 * e, 4)}, {v(vaddr)}, {s(R, 4)}, s{soff} offen')
        if e < n - 1:
            P(f's_add_u32 s{soff}, s{soff}, {step}')


KB_MOD, KB_CT, KB_G = 81920, 98304, 114688
GS = 1288
KB_W = KB_G + 16 * GS
KB_LDS = KB_W + 2 * 7168


def gen_kb():
    P = Prog('kb_kernel')
    WS, XS, TB, WI, PF = 4, 8, 12, 16, 20
    T2, JJ, W, TBK, T0, T1, TT, AM0, AM1, SH1, TD, AM2, AM3, UJ, UK = range(24, 39)
    P('s_cmp_ge_u32 s2, 256')
    P('s_cbranch_scc1 kb_done')
    stamp(P, 0)
    srd(P, WS, KA_WS, WS_END)
    srd(P, XS, KA_X, S * 1280)
    srd(P, WI, KA_WIN, 640 * 3456)
    pcsrd(P, TB, 'ctab', 16384)
    A = Alloc(1, 256)
    vl, vl16, vt, vu = [A.get() for _ in range(4)]
    P(f'v_readfirstlane_b32 s{W}, v0')
    P(f'v_and_b32 {v(vl)}, 63, v0')
    P(f'v_lshlrev_b32 {v(vl16)}, 4, {v(vl)}')
    P(f's_lshr_b32 s{W}, s{W}, 6')
    P(f's_lshl_b32 s{T1}, s{W}, 11')
    P(f's_add_u32 m0, s{T1}, {KB_CT}')
    P(f's_and_b32 s{T2}, s2, 7')
    for e in range(2):
        P(f'buffer_load_dwordx4 {v(vl16)}, {s(TB, 4)}, s{T1} offen offset:{1024 * e} lds', tw=['CT'])
    P(f's_bfe_u32 s{T0}, s2, 0x30003')
    P(f's_lshl3_add_u32 s{T2}, s{T2}, s{T0}')
    P(f's_lshr_b32 s{JJ}, s2, 6')
    P(f's_sub_u32 s{T0}, 64, s{T2}')
    P(f's_min_u32 s{TBK}, s{T0}, s{T2}')
    P(f's_and_b32 s{TBK}, s{TBK}, 31')
    P(f's_mul_i32 s{TBK}, s{TBK}, {T_BLK}')
    if T_OFF:
        P(f's_add_u32 s{TBK}, s{TBK}, {T_OFF}')
    P(f's_add_u32 m0, s{T1}, {KB_MOD}')
    P(f's_add_u32 s{T0}, s{T1}, {MOD_OFF}')
    for e in range(2):
        P(f'buffer_load_dwordx4 {v(vl16)}, {s(WS, 4)}, s{T0} offen offset:{1024 * e} lds', tw=['CT'])
    P(f's_mul_i32 s{TD}, s{W}, 10240')
    P(f's_mov_b32 m0, s{TD}')
    P(f's_add_u32 s{TD}, s{TD}, s{TBK}')
    L = Rec(P)
    for i in range(10):
        def one(i=i):
            if i and i % 4 == 0:
                P('s_add_u32 m0, m0, 4096')
                P(f's_add_u32 s{TD}, s{TD}, 4096')
            P(f'buffer_load_dwordx4 {v(vl16)}, {s(WS, 4)}, s{TD} offen offset:{1024 * (i % 4)} lds', tw=['T'])
        L.q.append(one)
    Q = Rec(P)
    XR = [A.get(4) for _ in range(2)]
    vx = A.get()
    Q(f's_lshl3_add_u32 s{TT}, s{JJ}, s{W}')
    Q(f's_lshl_b32 s{TT}, s{TT}, 6')
    Q(f's_add_u32 s{TT}, s{TT}, s{T2}')
    Q(f'v_mov_b32 {v(vt)}, {OOB:#x}')
    Q(f'v_cmp_gt_u32 vcc, 40, {v(vl)}')
    Q(f'v_cndmask_b32 {v(vx)}, {v(vt)}, {v(vl16)}, vcc')
    CF = [A.get(4) for _ in range(2)]
    va, vb0, vb1, vg = [A.get() for _ in range(4)]
    cv = A.get(8)
    Q(f's_cmp_eq_u32 s{T2}, 32\ns_cselect_b32 s{AM0}, 0, -1\ns_cselect_b32 s{SH1}, 0, {fl(-0.25)}')
    Q(f's_cmp_gt_u32 s{T2}, 32\ns_cselect_b32 s{SH1}, {fl(0.25)}, s{SH1}')
    Q(f's_cmp_eq_u32 s{T2}, 0\ns_cselect_b32 s{AM1}, 0, -1')
    Q(f's_lshl_b32 s{T0}, s{JJ}, 9')
    Q(f's_add_u32 s{T0}, s{T0}, s{T2}')
    Q(f'v_bfe_u32 {v(va)}, v0, 1, 3')
    Q(f'v_lshl_add_u32 {v(va)}, {v(va)}, 6, s{T0}')
    Q(f'v_cvt_f32_u32 {v(va)}, {v(va)}')
    Q(f'v_mul_f32 {v(va)}, {fl(1.0 / 2048)}, {v(va)}')
    Q(f'v_bfe_u32 {v(vg)}, v0, 4, 2')
    Q(f'v_cvt_f32_u32 {v(vb0)}, {v(vg)}')
    Q(f'v_mul_f32 {v(vb0)}, 4.0, {v(vb0)}')
    Q(f'v_and_b32 {v(vt)}, 1, v0')
    Q(f'v_cvt_f32_u32 {v(vt)}, {v(vt)}')
    Q(f'v_mul_f32 {v(vt)}, {fl(0.25)}, {v(vt)}')
    Q(f'v_fma_f32 {v(vb0)}, {v(vb0)}, {v(va)}, {v(vt)}')
    Q(f'v_add_f32 {v(vb1)}, s{SH1}, {v(vb0)}')
    for ks in range(2):
        vb = (vb0, vb1)[ks]
        for q in range(8):
            kk = 16 * (q >> 2) + (q & 3)
            if kk:
                Q(f'v_fmamk_f32 {v(cv + q)}, {v(va)}, {fl(kk)}, {v(vb)}')
        for q in range(8):
            Q(f'v_cos_f32 {v(cv + q)}, {v(cv + q if q else vb)}')
        for k in range(4):
            Q(f'v_cvt_pk_bf16_f32 {v(CF[ks] + k)}, {v(cv + 2 * k)}, {v(cv + 2 * k + 1)}')
        for k in range(4):
            Q(f'v_and_b32 {v(CF[ks] + k)}, s{(AM0, AM1)[ks]}, {v(CF[ks] + k)}')
    vr1 = [A.get() for _ in range(5)]
    vm1, vgw, vra0, vra1, vzw, vzr, vyw, vyr, vh, vmr, vct = [A.get() for _ in range(11)]
    Q(f's_mul_i32 s{T0}, s{W}, 160')
    Q(f'v_lshrrev_b32 {v(vt)}, 2, {v(vl)}')
    Q(f'v_and_b32 {v(vu)}, 3, v0')
    Q(f'v_lshlrev_b32 {v(vu)}, 3, {v(vu)}')
    Q(f'v_lshl_add_u32 {v(vm1)}, {v(vt)}, 8, {v(vu)}')
    Q(f'v_and_b32 {v(vgw)}, 7, {v(vt)}')
    Q(f'v_lshlrev_b32 {v(vgw)}, 5, {v(vgw)}')
    Q(f's_mul_i32 s{T1}, s{W}, 5')
    for mb in range(5):
        Q(f's_add_u32 s{AM2}, s{T1}, {mb}\ns_lshr_b32 s{AM3}, s{AM2}, 3\ns_and_b32 s{AM2}, s{AM2}, 7\n'
          f's_lshl_b32 s{AM2}, s{AM2}, 5\ns_lshl_b32 s{AM3}, s{AM3}, 14')
        Q(f'v_xor_b32 {v(vr1[mb])}, s{AM2}, {v(vgw)}')
        Q(f'v_add3_u32 {v(vr1[mb])}, {v(vr1[mb])}, {v(vm1)}, s{AM3}')
    Q(f's_lshl_b32 s{T1}, s{T0}, 1')
    Q(f's_add_u32 s{T1}, s{T1}, {KB_MOD}')
    Q(f'v_lshl_add_u32 {v(vm1)}, {v(vg)}, 4, s{T1}')
    Q(f'v_and_b32 {v(vh)}, 15, v0')
    Q(f'v_mul_u32_u24 {v(vgw)}, {GS}, {v(vh)}')
    Q(f'v_lshl_add_u32 {v(vgw)}, {v(vg)}, 3, {v(vgw)}')
    Q(f's_add_u32 s{T0}, s{T0}, {KB_G}')
    Q(f'v_add_u32 {v(vgw)}, s{T0}, {v(vgw)}')
    Q(f's_mul_i32 s{T0}, s{W}, {2 * GS}')
    Q(f's_add_u32 s{T0}, s{T0}, {KB_G}')
    Q(f'v_lshl_add_u32 {v(vra0)}, {v(vt)}, 6, {v(vu)}')
    Q(f'v_add_u32 {v(vra0)}, s{T0}, {v(vra0)}')
    Q(f'v_and_b32 {v(vt)}, 3, {v(vt)}')
    Q(f'v_lshl_add_u32 {v(vra1)}, {v(vt)}, 6, {v(vu)}')
    Q(f's_add_u32 s{T0}, s{T0}, 1024')
    Q(f'v_add_u32 {v(vra1)}, s{T0}, {v(vra1)}')
    Q(f's_lshl_b32 s{T0}, s{W}, 13')
    Q(f'v_mul_u32_u24 {v(vzw)}, 288, {v(vg)}')
    Q(f'v_lshl_add_u32 {v(vzw)}, {v(vh)}, 2, {v(vzw)}')
    Q(f'v_add_u32 {v(vzw)}, s{T0}, {v(vzw)}')
    Q(f'v_mul_u32_u24 {v(vzr)}, 144, {v(vh)}')
    Q(f'v_lshl_add_u32 {v(vzr)}, {v(vg)}, 4, {v(vzr)}')
    Q(f'v_add_u32 {v(vzr)}, s{T0}, {v(vzr)}')
    Q(f's_add_u32 s{T0}, s{T0}, 4608')
    Q(f'v_mul_u32_u24 {v(vyw)}, 80, {v(vh)}')
    Q(f'v_lshl_add_u32 {v(vyw)}, {v(vg)}, 4, {v(vyw)}')
    Q(f'v_add_u32 {v(vyw)}, s{T0}, {v(vyw)}')
    Q(f'v_min_u32 {v(vt)}, 39, {v(vl)}')
    Q(f'v_lshlrev_b32 {v(vt)}, 5, {v(vt)}')
    Q(f'v_add_u32 {v(vyr)}, s{T0}, {v(vt)}')
    Q(f'v_add_u32 {v(vmr)}, {KB_MOD}, {v(vt)}')
    Q(f'v_add_u32 {v(vct)}, {KB_CT}, {v(vl16)}')
    weave(P, L.q, Q.q, 12)
    for o in Q.q:
        o()
    P(f's_mul_i32 s{T0}, s{TT}, 1280')
    for e in range(2):
        P(f'buffer_load_dwordx4 {v(XR[e], 4)}, {v(vx)}, {s(XS, 4)}, s{T0} offen offset:{640 * e}')
    vwr, vws = A.get(), A.get()
    WF = [A.get(4) for _ in range(2)]
    assert all((x * 4682) >> 16 == x // 14 for x in range(512))
    P(f'v_mul_u32_u24 {v(vt)}, 4682, v0')
    P(f'v_lshrrev_b32 {v(vt)}, 16, {v(vt)}')
    P(f'v_mul_u32_u24 {v(vu)}, 14, {v(vt)}')
    P(f'v_sub_u32 {v(vu)}, v0, {v(vu)}')
    P(f'v_mul_u32_u24 {v(vws)}, 3456, {v(vt)}')
    P(f'v_lshl_add_u32 {v(vws)}, {v(vu)}, 4, {v(vws)}')
    P(f'v_cmp_gt_u32 vcc, 7, {v(vu)}')
    P(f'v_add_u32 {v(vt)}, 1728, {v(vws)}')
    P(f'v_subrev_u32 {v(vws)}, 112, {v(vws)}')
    P(f'v_cndmask_b32 {v(vws)}, {v(vws)}, {v(vt)}, vcc')
    P(f's_and_b32 s{UJ}, s2, 15')
    P(f's_lshr_b32 s{UK}, s2, 4')
    P(f's_mul_i32 s{T0}, s{UJ}, 112')
    P(f's_lshr_b32 s{T1}, s{UJ}, 2')
    P(f's_lshl_b32 s{T1}, s{T1}, 4')
    P(f's_sub_u32 s{T0}, s{T0}, s{T1}')
    P(f's_mul_i32 s{T1}, s{UK}, {32 * 3456}')
    P(f's_add_u32 s{T0}, s{T0}, s{T1}')
    P(f's_add_u32 s{T1}, s{T0}, {512 * 3456}')
    P(f's_lshl_b32 s{AM2}, s{W}, 10')
    P(f's_cmp_eq_u32 s{W}, 7')
    P('s_cbranch_scc1 kb_now')
    P(f's_add_u32 m0, s{AM2}, {KB_W}')
    P(f'buffer_load_dwordx4 {v(vws)}, {s(WI, 4)}, s{T0} offen lds', tw=['WL'])
    P(f's_add_u32 m0, s{AM2}, {KB_W + 7168}')
    P(f'buffer_load_dwordx4 {v(vws)}, {s(WI, 4)}, s{T1} offen lds', tw=['WL'])
    P.label('kb_now')
    P(f'v_bfe_u32 {v(vt)}, v0, 2, 2')
    P(f'v_lshl_add_u32 {v(vt)}, {v(vg)}, 3, {v(vt)}')
    P(f'v_mul_u32_u24 {v(vwr)}, 224, {v(vt)}')
    P(f'v_and_b32 {v(vt)}, 3, v0')
    P(f'v_bfe_u32 {v(vu)}, v0, 1, 1')
    P(f's_and_b32 s{T0}, s{UJ}, 1')
    P(f'v_xor_b32 {v(vu)}, s{T0}, {v(vu)}')
    P(f'v_mul_u32_u24 {v(vu)}, 112, {v(vu)}')
    P(f'v_and_b32 {v(vws)}, 1, v0')
    P(f'v_lshl_add_u32 {v(vu)}, {v(vws)}, 3, {v(vu)}')
    P(f'v_lshlrev_b32 {v(vt)}, 3, {v(vt)}')
    P(f's_cmp_eq_u32 s{W}, 3')
    P('s_cselect_b64 vcc, -1, 0')
    P(f'v_cndmask_b32 {v(vt)}, {v(vt)}, {v(vu)}, vcc')
    P(f's_lshl_b32 s{T0}, s{W}, 5')
    P(f's_cmp_gt_u32 s{W}, 3')
    P(f's_cselect_b32 s{T1}, 16, 0')
    P(f's_sub_u32 s{T0}, s{T0}, s{T1}')
    P(f's_add_u32 s{T0}, s{T0}, {KB_W}')
    P(f'v_add3_u32 {v(vwr)}, {v(vwr)}, {v(vt)}, s{T0}')
    P(f's_and_b32 s{T0}, s{UJ}, 3')
    P(f's_lshl3_add_u32 s{T0}, s{T0}, s{W}')
    P(f's_cmp_eq_u32 s{T0}, 27')
    P(f's_cselect_b32 s{AM3}, 0, -1')
    P(f's_mul_i32 s{UJ}, s{UJ}, 143360')
    P(f's_movk_i32 s{T0}, 3072')
    P(f's_cmp_lt_u32 s{W}, 4')
    P(f's_cselect_b32 s{T0}, 4096, s{T0}')
    P(f's_cselect_b32 s{T1}, {61440 + 4096}, 0')
    P(f's_mul_i32 s{UK}, s{UK}, s{T0}')
    P(f's_add_u32 s{UJ}, s{UJ}, s{UK}')
    P(f's_add_u32 s{UJ}, s{UJ}, s{AM2}')
    P(f's_add_u32 s{UJ}, s{UJ}, s{T1}')
    P(f's_add_u32 s{UJ}, s{UJ}, {WIN_OFF - 4096}')
    P(f's_lshl4_add_u32 s{UK}, s{T0}, s{UJ}')
    P('s_cmp_lt_u32 s2, 64')
    P(f's_cselect_b32 s{UK}, s{UK}, {OOB >> 1:#x}')
    P(f's_cmp_eq_u32 s{W}, 7')
    P(f's_cselect_b32 s{UJ}, {OOB >> 1:#x}, s{UJ}')
    P(f's_cselect_b32 s{UK}, s{UJ}, s{UK}')
    stamp(P, 1)
    TFB = A.get(40)
    TF = [[TFB + 4 * (2 * mb + ks) for ks in range(2)] for mb in range(5)]
    MCB = A.get(40)
    MC = [MCB + 4 * mb for mb in range(5)]
    D1 = [MCB + 20 + 4 * mb for mb in range(5)]
    CA = [[A.get(4) for cp in range(2)] for mb in range(3)]
    TW = [[A.get(4) for nb in range(2)] for mb in range(3)]
    CB = [[A.get(4) for ks in range(2)] for nb in range(2)]
    GA = A.get(16)
    PFC = A.get(1)
    P.need('CT')
    P('s_barrier')
    for mb in range(5):
        P(f'ds_read_b128 {v(MC[mb], 4)}, {v(vm1)} offset:{2560 + 64 * mb}')
    for k in range(6):
        P(f'ds_read_b128 {v(CA[k >> 1][k & 1], 4)}, {v(vct)} offset:{CT_CA + 1024 * k}')
    for k in range(6):
        P(f'ds_read_b128 {v(TW[k >> 1][k & 1], 4)}, {v(vct)} offset:{CT_TW + 1024 * k}')
    for k in range(4):
        P(f'ds_read_b128 {v(CB[k >> 1][k & 1], 4)}, {v(vct)} offset:{CT_CB + 1024 * k}')
    for e in range(2):
        for k in range(2):
            P(f'ds_read_b128 {v(GA + 8 * e + 4 * k, 4)}, {v(vmr)} offset:{2 * 2560 + 1280 * e + 16 * k}')
    stamp(P, 2)
    P.need('T')
    P('s_barrier')
    stamp(P, 3)
    for mb in range(5):
        for ks in range(2):
            for h in range(2):
                P(f'ds_read_b64_tr_b16 {v(TF[mb][ks] + 2 * h, 2)}, {v(vr1[mb])} offset:{(32 * ks + 16 * h) * 256}')
    code_prefetch(P, PF, vt, PFC, 'kg_kernel', 'kb_kernel', 512, 1, back=True)
    for mb in range(5):
        for ks in range(2):
            mfma(P, v(D1[mb], 4), v(TF[mb][ks], 4), v(CF[ks], 4), v(D1[mb], 4) if ks else '0')
    for mb in range(5):
        for h in range(2):
            P(f'v_pk_mul_f32 {v(D1[mb] + 2 * h, 2)}, {v(D1[mb] + 2 * h, 2)}, {v(MC[mb] + 2 * h, 2)}')
    P('s_cmp_lg_u32 s2, 0')
    P('s_cbranch_scc1 kb_nodc')
    for mb in range(5):
        P(f'ds_read_b128 {v(MC[mb], 4)}, {v(vm1)} offset:{64 * mb}')
    P(f'v_cmp_eq_u32 vcc, 0, {v(vh)}')
    P(f'v_mov_b32 {v(vt)}, {fl(2048.0)}')
    P(f'v_cndmask_b32 {v(vt)}, 0, {v(vt)}, vcc')
    for mb in range(5):
        for i in range(4):
            P(f'v_fmac_f32 {v(D1[mb] + i)}, {v(MC[mb] + i)}, {v(vt)}')
    P.label('kb_nodc')
    for mb in range(5):
        P(f'v_cvt_pk_bf16_f32 {v(D1[mb])}, {v(D1[mb])}, {v(D1[mb] + 1)}')
        P(f'v_cvt_pk_bf16_f32 {v(D1[mb] + 1)}, {v(D1[mb] + 2)}, {v(D1[mb] + 3)}')
        P(f'ds_write_b64 {v(vgw)}, {v(D1[mb], 2)} offset:{32 * mb}', tw=['G'])
    stamp(P, 4)
    P.need('G', 'WL')
    P('s_barrier')
    stamp(P, 5)
    GF = [[TFB + 4 * (2 * nb + cp) for cp in range(2)] for nb in range(2)]
    DA = [[TFB + 16 + 4 * (2 * mb + nb) for nb in range(2)] for mb in range(3)]
    CBR, SBR = MCB, MCB + 16
    for cp in range(2):
        for nb in range(2):
            P(f'ds_read_b64_tr_b16 {v(GF[nb][cp], 2)}, {v(vra0)} offset:{cp * GS + 32 * nb}')
            P(f'ds_read_b64_tr_b16 {v(GF[nb][cp] + 2, 2)}, {v(vra1)} offset:{cp * GS + 32 * nb}')
    for e in range(2):
        for h in range(2):
            P(f'ds_read_b64_tr_b16 {v(WF[e] + 2 * h, 2)}, {v(vwr)} offset:{7168 * e + 4 * 224 * h}')
    for mb in range(3):
        for cp in range(2):
            for nb in range(2):
                mfma(P, v(DA[mb][nb], 4), v(CA[mb][cp], 4), v(GF[nb][cp], 4), v(DA[mb][nb], 4) if cp else '0')
    for e in range(2):
        for k in range(2):
            P(f'ds_read_b128 {v(CBR + 8 * e + 4 * k, 4)}, {v(vmr)} offset:{4 * 2560 + 1280 * e + 16 * k}')
            P(f'ds_read_b128 {v(SBR + 8 * e + 4 * k, 4)}, {v(vmr)} offset:{3 * 2560 + 1280 * e + 16 * k}')
    for mb in range(3):
        for nb in range(2):
            d, t = DA[mb][nb], TW[mb][nb]
            c0 = cv + 4 * nb
            for p in range(2):
                P(f'v_pk_mul_f32 {v(c0 + 2 * p, 2)}, {v(d + 2 * p, 2)}, {v(t + 2 * p, 2)} op_sel_hi:[1,0]')
        for nb in range(2):
            d, t = DA[mb][nb], TW[mb][nb]
            c0 = cv + 4 * nb
            for p in range(2):
                P(f'v_pk_fma_f32 {v(c0 + 2 * p, 2)}, {v(d + 2 * p, 2)}, {v(t + 2 * p, 2)}, {v(c0 + 2 * p, 2)} '
                  f'op_sel:[1,1,0] op_sel_hi:[0,1,1] neg_hi:[1,0,0]')
        for nb in range(2):
            d = DA[mb][nb]
            c0 = cv + 4 * nb
            for p in range(2):
                P(f'v_cvt_pk_bf16_f32 {v(d + p)}, {v(c0 + 2 * p)}, {v(c0 + 2 * p + 1)}')
        for nb in range(2):
            for p in range(2):
                P(f'ds_write_b32 {v(vzw)}, {v(DA[mb][nb] + p)} offset:{(8 * mb + p) * 144 + 64 * nb}')
    for e in range(2):
        for k in range(4):
            P(f'v_and_b32 {v(WF[e] + k)}, s{AM3}, {v(WF[e] + k)}')
        P(f'buffer_store_dwordx4 {v(WF[e], 4)}, {v(vl16)}, {s(WS, 4)}, s{(UJ, UK)[e]} offen{WT}')
    stamp(P, 6)
    ZF = [[GF[mb][ks] for ks in range(2)] for mb in range(2)]
    DB = [[CA[mb][nb] for nb in range(2)] for mb in range(2)]
    Y = DA[0][0]
    for ks in range(2):
        for mb in range(2):
            P(f'ds_read_b128 {v(ZF[mb][ks], 4)}, {v(vzr)} offset:{16 * 144 * mb + 64 * ks}')
    XU = TW[0][0]
    assert TW[1][1] == XU + 12
    for e in range(2):
        for k in range(4):
            unpack(P, XU + 8 * e + 2 * k, XU + 8 * e + 2 * k + 1, XR[e] + k)
    for ks in range(2):
        for mb in range(2):
            for nb in range(2):
                mfma(P, v(DB[mb][nb], 4), v(ZF[mb][ks], 4), v(CB[nb][ks], 4), v(DB[mb][nb], 4) if ks else '0')
    for nb in range(2):
        P(f'ds_write_b128 {v(vyw)}, {v(DB[0][nb], 4)} offset:{1280 * nb}')
    P('s_mov_b64 exec, 0xffff')
    for nb in range(2):
        P(f'ds_write_b128 {v(vyw)}, {v(DB[1][nb], 4)} offset:{1280 * nb + 64}')
    P('s_mov_b64 exec, -1')
    for e in range(2):
        for k in range(2):
            P(f'ds_read_b128 {v(Y + 8 * e + 4 * k, 4)}, {v(vyr)} offset:{1280 * e + 16 * k}')
    stamp(P, 7)
    sm, sq = cv + 4, cv + 6
    for k in range(8):
        P(f'v_pk_fma_f32 {v(Y + 2 * k, 2)}, {v(Y + 2 * k, 2)}, {v(GA + 2 * k, 2)}, {v(XU + 2 * k, 2)}')
    P(f'v_pk_add_f32 {v(sm, 2)}, {v(Y, 2)}, {v(Y + 2, 2)}')
    P(f'v_pk_mul_f32 {v(sq, 2)}, {v(Y, 2)}, {v(Y, 2)}')
    P(f'v_pk_fma_f32 {v(sq, 2)}, {v(Y + 2, 2)}, {v(Y + 2, 2)}, {v(sq, 2)}')
    for k in range(2, 8):
        P(f'v_pk_add_f32 {v(sm, 2)}, {v(sm, 2)}, {v(Y + 2 * k, 2)}')
        P(f'v_pk_fma_f32 {v(sq, 2)}, {v(Y + 2 * k, 2)}, {v(Y + 2 * k, 2)}, {v(sq, 2)}')
    P(f'v_cmp_gt_u32 vcc, 40, {v(vl)}')
    P(f'v_add_f32 {v(sm)}, {v(sm)}, {v(sm + 1)}')
    P(f'v_add_f32 {v(sq)}, {v(sq)}, {v(sq + 1)}')
    P(f'v_cndmask_b32 {v(sm)}, 0, {v(sm)}, vcc')
    P(f'v_cndmask_b32 {v(sq)}, 0, {v(sq)}, vcc')
    side = Rec(P)
    for e in range(2):
        for k in range(4):
            y = Y + 8 * e + 2 * k
            side(f'v_cvt_pk_bf16_f32 {v(XR[e] + k)}, {v(y)}, {v(y + 1)}')
    red = Rec(P)
    for ctl in ('row_ror:8', 'row_ror:4', 'row_ror:2', 'row_ror:1'):
        red.q.append(lambda ctl=ctl: (dpp_add(P, sm, sm, sm, ctl), dpp_add(P, sq, sq, sq, ctl)))
    for ctl, row in (('row_bcast:15', 0xa), ('row_bcast:31', 0xc)):
        red.q.append(lambda ctl=ctl, row=row: (dpp_add(P, sm, sm, sm, ctl, row=row), dpp_add(P, sq, sq, sq, ctl, row=row)))
    side.q.pop(0)()
    side.q.pop(0)()
    weave(P, red.q, side.q, 1)
    P(f'v_readlane_b32 s{T0}, {v(sm)}, 63')
    P(f'v_readlane_b32 s{T1}, {v(sq)}, 63')
    P(f's_mul_i32 s{TD}, s{TT}, 1280')
    P(f's_add_u32 s{TD}, s{TD}, {X1_OFF}')
    P(f'v_mov_b32 {v(sm)}, s{T0}')
    P(f'v_mov_b32 {v(sq)}, s{T1}')
    for e in range(2):
        P(f'buffer_store_dwordx4 {v(XR[e], 4)}, {v(vx)}, {s(WS, 4)}, s{TD} offen offset:{640 * e}{WT}')
    ln_finish(P, [(sm, sq)], 640, [cv])
    for k in range(8):
        P(f'v_pk_fma_f32 {v(Y + 2 * k, 2)}, {v(Y + 2 * k, 2)}, {v(sq, 2)}, {v(sm, 2)} op_sel_hi:[1,0,0]')
    for k in range(8):
        P(f'v_pk_fma_f32 {v(Y + 2 * k, 2)}, {v(Y + 2 * k, 2)}, {v(CBR + 2 * k, 2)}, {v(SBR + 2 * k, 2)}')
    for k in range(8):
        P(f'v_cvt_pk_bf16_f32 {v(GA + k)}, {v(Y + 2 * k)}, {v(Y + 2 * k + 1)}')
    P(f's_lshr_b32 s{T0}, s{TT}, 4')
    P(f's_mul_i32 s{T0}, s{T0}, 20480')
    P(f's_and_b32 s{T1}, s{TT}, 15')
    P(f's_lshl4_add_u32 s{T0}, s{T1}, s{T0}')
    P(f's_add_u32 s{T0}, s{T0}, {H2_OFF}')
    P(f's_add_u32 s{T1}, s{T0}, {40 * 256}')
    P(f'v_lshlrev_b32 {v(vt)}, 8, {v(vl)}')
    P(f'v_mov_b32 {v(vu)}, {OOB:#x}')
    P(f'v_cndmask_b32 {v(vt)}, {v(vu)}, {v(vt)}, vcc')
    P(f'buffer_store_dwordx4 {v(GA, 4)}, {v(vt)}, {s(WS, 4)}, s{T0} offen')
    P(f'buffer_store_dwordx4 {v(GA + 4, 4)}, {v(vt)}, {s(WS, 4)}, s{T1} offen')
    stamp(P, 8)
    endpgm(P, 9)
    P.label('kb_done')
    P('s_endpgm')
    return P


KW_LDS = 143360
GC0 = -2.0 * LOG2E * 0.7978845608028654
GC1 = GC0 * 0.044715


def gelu_group(P, xs, tmp, sc1, vc0):
    ts = [tmp + 2 * i for i in range(len(xs))]
    for x, t in zip(xs, ts):
        P(f'v_pk_mul_f32 {v(t, 2)}, {v(x, 2)}, {v(x, 2)}')
    for x, t in zip(xs, ts):
        P(f'v_pk_fma_f32 {v(t, 2)}, {v(t, 2)}, {s(sc1, 2)}, {v(vc0, 2)}')
    for x, t in zip(xs, ts):
        P(f'v_pk_mul_f32 {v(t, 2)}, {v(t, 2)}, {v(x, 2)}')
    for x, t in zip(xs, ts):
        P(f'v_exp_f32 {v(t)}, {v(t)}')
        P(f'v_exp_f32 {v(t + 1)}, {v(t + 1)}')
    for x, t in zip(xs, ts):
        P(f'v_pk_add_f32 {v(t, 2)}, {v(t, 2)}, 1.0 op_sel_hi:[1,0]')
    for x, t in zip(xs, ts):
        P(f'v_rcp_f32 {v(t)}, {v(t)}')
        P(f'v_rcp_f32 {v(t + 1)}, {v(t + 1)}')
    for x, t in zip(xs, ts):
        P(f'v_pk_mul_f32 {v(x, 2)}, {v(x, 2)}, {v(t, 2)}')


KS_RB = 12
Z2B = 61440
KS_A = KS_RB * 7168
KG_LDS = KS_A + 4 * 16384
KO_RS = 336
SPIN = 20000


def gen_kg():
    P = Prog('kg_kernel')
    WS, BS, SP, MS = 4, 8, 12, 16
    W, W10, RW, JT, PAR, J, H, T0, T1, T2, AO, GO, CNT, LA, SAO, UO, RB, XO = range(20, 38)
    C1, M1, XM = 38, 40, 42
    P('s_cmp_ge_u32 s2, 256')
    P('s_cbranch_scc1 kg_done')
    stamp(P, 0)
    srd(P, WS, KA_WS, WS_END)
    srd(P, SP, KA_WSP, S * 4096)
    C = Alloc(1, 256)
    vl, vl16, vl8, vt, vu, vb, vb2, vh, vg = [C.get() for _ in range(9)]
    vsrc = [C.get() for _ in range(4)]
    var = [C.get() for _ in range(4)]
    BASE = C.n

    def ldsb(E, dst, off):
        E(f'ds_read_b128 {v(dst, 4)}, {v((vl16, vb, vb2)[off >> 16])} offset:{off & 65535}')

    def tile_srd(E, reg, size):
        E(f's_add_u32 s{BS}, s{WS}, s{reg}\ns_addc_u32 s{BS + 1}, s{WS + 1}, 0')
        E(f's_mov_b32 s{BS + 2}, {size}')

    def spin(name, load, test):
        P(f's_mov_b32 s{CNT}, 0')
        test()
        P(f's_cbranch_scc1 {name}_ok')
        P.label(f'{name}_again')
        P(f's_sleep {SLEEP}')
        load()
        P(f's_add_u32 s{CNT}, s{CNT}, 1')
        test()
        P(f's_cbranch_scc1 {name}_ok')
        P(f's_cmp_lt_u32 s{CNT}, {SPIN}')
        P(f's_cbranch_scc1 {name}_again')
        P.label(f'{name}_ok')

    def no_sentinel(regs):
        def test():
            r = list(regs)
            if len(r) == 1:
                P(f'v_cmp_eq_u32 vcc, -1, {v(r[0])}')
            else:
                first = r.pop(0)
                while r:
                    if len(r) >= 2:
                        P(f'v_max3_u32 {v(vt)}, {v(first)}, {v(r.pop(0))}, {v(r.pop(0))}')
                    else:
                        P(f'v_max_u32 {v(vt)}, {v(first)}, {v(r.pop(0))}')
                    first = vt
                P(f'v_cmp_eq_u32 vcc, -1, {v(vt)}')
            P('s_cmp_eq_u64 vcc, 0')
        return test

    A = Alloc(BASE, 256)
    va1, vgr, vx8 = [A.get() for _ in range(3)]
    vc0 = A.get(2)
    acc2 = [[A.get(4) for b in range(4)] for mb in range(2)]
    acc1 = [[A.get(4) for b in range(3)] for mb in range(2)]
    vxw, vxr, vgl, vtw, vtr = [A.get() for _ in range(5)]
    Bf = [[A.get(4) for b in range(4)] for _ in range(2)]
    tmp = A.get(8)
    pk = [A.get(4) for _ in range(8)]
    stt = A.get(16)
    GR = A.get(16)
    Af = [[(ks * 2 + mb) * 4 for ks in range(20)] for mb in range(2)]
    P(f'v_readfirstlane_b32 s{W}, v0')
    P(f'v_and_b32 {v(vl)}, 63, v0')
    P(f'v_lshlrev_b32 {v(vl16)}, 4, {v(vl)}')
    P(f'v_add_u32 {v(va1)}, 20480, {v(vl16)}')
    P(f's_and_b32 s{T0}, s2, 3')
    P(f's_bfe_u32 s{T1}, s2, 0x20003')
    P(f's_lshl2_add_u32 s{T2}, s{T0}, s{T1}')
    P(f's_bfe_u32 s{H}, s2, 0x10002')
    P(f's_lshr_b32 s{J}, s2, 5')
    P(f's_lshl3_add_u32 s{JT}, s{H}, s{J}')
    P(f's_lshr_b32 s{W}, s{W}, 6')
    P(f's_mul_i32 s{T0}, s{JT}, 143360')
    P(f's_add_u32 s{T0}, s{T0}, {WIN_OFF}')
    P(f's_lshl2_add_u32 s{RW}, s{T2}, s{W}')
    P(f's_mul_i32 s{AO}, s{RW}, 40960')
    P(f's_add_u32 s{AO}, s{AO}, {H2_OFF}')
    P(f's_lshl_b32 s{W10}, s{W}, 10')
    P(f's_add_u32 m0, s{W10}, {Z2B}')
    tile_srd(P, T0, 143360)
    P(f's_mov_b32 s{BS + 3}, 0x20000')
    nb = [0]

    def dma_upto(E, n, tag):
        while nb[0] < n:
            i = nb[0]
            if i:
                E('s_add_u32 m0, m0, 4096')
            E(f'buffer_load_dwordx4 {v(vl16)}, {s(BS, 4)}, m0 offen lds', tw=[f'{tag}{i}'])
            nb[0] += 1

    def issueW(E, ks):
        dma_upto(E, ks + 1, 'W')
        for mb in range(2):
            E(f'buffer_load_dwordx4 {a(Af[mb][ks], 4)}, {v((vl16, va1)[mb])}, {s(WS, 4)}, s{AO} offen offset:{1024 * (ks % 4)}')
        if ks % 4 == 3:
            E(f's_add_u32 s{AO}, s{AO}, 4096')

    LEAD = KW_LEAD
    for ks in range(LEAD):
        issueW(P, ks)
    stamp(P, 1)
    P(f's_and_b32 s{PAR}, s{JT}, 1')
    P(f's_mov_b32 s{C1}, {fl(GC1)}')
    P(f's_mov_b32 s{C1 + 1}, {fl(GC1)}')
    P(f'v_mov_b32 {v(vc0)}, {fl(GC0)}')
    P(f'v_mov_b32 {v(vc0 + 1)}, {fl(GC0)}')
    P(f'v_add_u32 {v(vb)}, 65536, {v(vl16)}')
    P(f'v_add_u32 {v(vb2)}, 131072, {v(vl16)}')
    P(f'v_lshlrev_b32 {v(vl8)}, 3, {v(vl)}')
    P(f'v_and_b32 {v(vx8)}, 255, {v(vl8)}')
    P(f's_lshl_b32 s{T0}, s{PAR}, 3')
    P(f's_lshl_b32 s{XM}, 0x00ff00ff, s{T0}')
    P(f's_mov_b32 s{XM + 1}, s{XM}')
    P(f's_mov_b32 s{M1}, 0xaaaaaaaa')
    P(f's_mov_b32 s{M1 + 1}, 0xaaaaaaaa')
    P(f'v_and_b32 {v(vh)}, 15, v0')
    P(f'v_bfe_u32 {v(vg)}, v0, 4, 2')
    P(f'v_lshrrev_b32 {v(vt)}, 2, {v(vl)}')
    P(f'v_and_b32 {v(vu)}, 1, v0')
    P(f'v_lshl_add_u32 {v(vt)}, {v(vt)}, 1, {v(vu)}')
    P(f'v_lshlrev_b32 {v(vgr)}, 3, {v(vt)}')
    P(f'v_lshrrev_b32 {v(vt)}, 5, {v(vl)}')
    P(f'v_lshl_add_u32 {v(vgl)}, {v(vt)}, 11, {v(vx8)}')
    P(f'v_bfe_u32 {v(vt)}, v0, 2, 1')
    P(f'v_bfe_u32 {v(vu)}, v0, 3, 2')
    P(f'v_lshl_add_u32 {v(vt)}, {v(vt)}, 2, {v(vu)}')
    P(f'v_and_b32 {v(vu)}, 3, v0')
    P(f'v_lshl_add_u32 {v(vt)}, {v(vt)}, 2, {v(vu)}')
    P(f's_lshl_b32 s{T0}, s{W}, 8')
    P(f's_add_u32 s{T0}, s{T0}, {Z2B}')
    P(f'v_lshl_add_u32 {v(vtw)}, {v(vt)}, 2, s{T0}')
    P(f'v_lshl_add_u32 {v(vtr)}, {v(vg)}, 4, s{T0}')
    P(f's_add_u32 s{T0}, s{W10}, {Z2B + 1024}')
    P(f'v_lshlrev_b32 {v(vxw)}, 6, {v(vh)}')
    P(f'v_lshl_add_u32 {v(vxw)}, {v(vg)}, 3, {v(vxw)}')
    P(f'v_add_u32 {v(vxw)}, s{T0}, {v(vxw)}')
    P(f's_lshl_b32 s{T1}, s{PAR}, 9')
    P(f's_sub_u32 s{T0}, s{T0}, s{T1}')
    P(f's_add_u32 s{T0}, s{T0}, 512')
    P(f'v_bfe_u32 {v(vt)}, v0, 2, 3')
    P(f'v_lshlrev_b32 {v(vt)}, 6, {v(vt)}')
    P(f'v_lshl_add_u32 {v(vt)}, {v(vu)}, 3, {v(vt)}')
    P(f'v_add_u32 {v(vxr)}, s{T0}, {v(vt)}')
    P(f's_lshl_b32 s{GO}, s{RW}, 12')
    P(f's_add_u32 s{GO}, s{GO}, {GRAN_OFF}')
    P(f'v_lshrrev_b32 {v(vt)}, 3, {v(vl)}')
    P(f'v_and_b32 {v(vu)}, 7, v0')
    P(f'v_xor_b32 {v(vu)}, {v(vu)}, {v(vg)}')
    P(f'v_lshlrev_b32 {v(vt)}, 12, {v(vt)}')
    P(f'v_lshl_add_u32 {v(vsrc[0])}, {v(vu)}, 4, {v(vt)}')
    P(f'v_xor_b32 {v(vt)}, 64, {v(vsrc[0])}')
    P(f'v_add_u32 {v(vsrc[1])}, {32768 - 1024}, {v(vt)}')
    P(f'v_add_u32 {v(vsrc[2])}, {2 * (32768 - 1024)}, {v(vsrc[0])}')
    P(f'v_add_u32 {v(vsrc[3])}, {3 * (32768 - 1024)}, {v(vt)}')
    P(f's_lshl_b32 s{SAO}, s{RW}, 17')
    P(f's_lshl_b32 s{T1}, s{H}, 11')
    P(f's_add_u32 s{SAO}, s{SAO}, s{T1}')
    P(f's_lshl_b32 s{LA}, s{W}, 14')
    P(f's_add_u32 s{LA}, s{LA}, {KS_A}')
    P(f'v_bfe_u32 {v(vt)}, v0, 1, 3')
    P(f'v_lshrrev_b32 {v(vu)}, 1, {v(vg)}')
    P(f'v_xor_b32 {v(vt)}, {v(vt)}, {v(vu)}')
    P(f'v_lshlrev_b32 {v(vt)}, 4, {v(vt)}')
    P(f'v_lshl_add_u32 {v(vt)}, {v(vh)}, 7, {v(vt)}')
    P(f'v_and_b32 {v(vu)}, 1, {v(vg)}')
    P(f'v_lshl_add_u32 {v(vt)}, {v(vu)}, 3, {v(vt)}')
    P(f'v_add_u32 {v(var[0])}, s{LA}, {v(vt)}')
    for c in range(1, 4):
        P(f'v_xor_b32 {v(var[c])}, {32 * c}, {v(var[0])}')

    def syncW(ks):
        P.need(*[f'W{i}' for i in range(ks + 1)])
        P('s_barrier')

    def z1_dma(E, i):
        E(f's_add_u32 m0, s{W10}, {4096 * i}')
        E(f'buffer_load_dwordx4 {v(vl16)}, {s(BS, 4)}, m0 offen lds', tw=['Y'])

    syncW(0)
    for b in range(4):
        ldsb(P, Bf[0][b], Z2B + b * 1024)
    stamp(P, 2)
    ny = 0
    for ks in range(20):
        side = Rec(P)
        if ks + 1 < 20:
            if ks % KW_SYNC == 0:
                syncW(min(ks + KW_SYNC, 19))
            P('s_waitcnt lgkmcnt(0)')
            for b in range(4):
                ldsb(side, Bf[(ks + 1) & 1][b], Z2B + ((ks + 1) * 4 + b) * 1024)
        if ks + LEAD < 20:
            issueW(side, ks + LEAD)
        else:
            for _ in range(KW_YRATE):
                if ny < 15:
                    z1_dma(side, ny)
                    ny += 1
        main = [lambda b=b, mb=mb: mfma(P, v(acc2[mb][b], 4), a(Af[mb][ks], 4), v(Bf[ks & 1][b], 4),
                                        v(acc2[mb][b], 4) if ks else '0') for b in range(4) for mb in range(2)]
        weave(P, main, side.q, 2)
        for o in side.q:
            o()
    stamp(P, 3)

    def issueA(E, st):
        for i in range(4):
            pre = f's_add_u32 m0, s{LA}, {(st % 4) * 4096}\n' if i == 0 else ''
            post = f'\ns_add_u32 s{SAO}, s{SAO}, 128' if i == 3 else ''
            E(pre + f'buffer_load_dwordx4 {v(vsrc[i])}, {s(SP, 4)}, s{SAO} offen offset:{1024 * i} lds' + post, tw=[f'A{st}'])

    P('s_barrier')
    pre = Rec(P)
    for i in range(ny, 15):
        pre.q.append(lambda i=i: z1_dma(P, i))
    for st in range(KS_LEAD // 2):
        issueA(pre, st)
    V = Rec(P)
    for b in range(4):
        xs = [acc2[0][b], acc2[0][b] + 2, acc2[1][b], acc2[1][b] + 2]
        gelu_group(V, xs, tmp, C1, vc0)
        if b == 3:
            for k, x in enumerate(xs):
                V(f'v_cvt_pk_bf16_f32 {v(pk[3] + k)}, {v(x)}, {v(x + 1)}')
            for mb in range(2):
                V(f'ds_write_b64 {v(vxw)}, {v(pk[3] + 2 * mb, 2)} offset:{32 * mb}')
            for x in xs:
                for e in range(2):
                    V(f'v_cndmask_b32 {v(x + e)}, 0, {v(x + e)}, {s(XM, 2)}')
            for tb in range(2):
                V(f'ds_read_b64_tr_b16 {v(pk[3] + 2 * tb, 2)}, {v(vxr)} offset:{32 * tb}')
        for k, x in enumerate(xs):
            sm, sq = stt + 2 * k, stt + 8 + 2 * k
            if b == 0:
                V(f'v_pk_mul_f32 {v(sq, 2)}, {v(x, 2)}, {v(x, 2)}')
            else:
                y = [acc2[0][0], acc2[0][0] + 2, acc2[1][0], acc2[1][0] + 2][k] if b == 1 else sm
                V(f'v_pk_add_f32 {v(sm, 2)}, {v(x, 2)}, {v(y, 2)}')
                V(f'v_pk_fma_f32 {v(sq, 2)}, {v(x, 2)}, {v(x, 2)}, {v(sq, 2)}')
    for base in (stt, stt + 8):
        for k in range(4):
            dpp_add(V, base + k, base + k, base + k, 'row_ror:8', bank=0x3)
    for base in (stt, stt + 8):
        for k in range(4):
            dpp_add(V, base + k, base + 4 + k, base + 4 + k, 'row_ror:8', bank=0xc)
    for base in (stt, stt + 8):
        for k in range(2):
            dpp_add(V, base + k, base + k, base + k, 'row_half_mirror', bank=0x5)
    for base in (stt, stt + 8):
        for k in range(2):
            dpp_add(V, base + k, base + 2 + k, base + 2 + k, 'row_half_mirror', bank=0xa)
    for ctl in ('quad_perm:[2,3,0,1]', 'quad_perm:[1,0,3,2]'):
        for base in (stt, stt + 8):
            for k in range(2):
                dpp_add(V, base + k, base + k, base + k, ctl)
    V(f'v_cndmask_b32 {v(stt)}, {v(stt)}, {v(stt + 1)}, {s(M1, 2)}')
    V(f'v_cndmask_b32 {v(stt + 1)}, {v(stt + 8)}, {v(stt + 9)}, {s(M1, 2)}')
    V(f'v_and_b32 {v(stt)}, -2, {v(stt)}')
    V(f'v_and_b32 {v(stt + 1)}, -2, {v(stt + 1)}')
    V(f's_lshl_b32 s{T0}, s{JT}, 8')
    V(f's_add_u32 s{T0}, s{T0}, s{GO}')
    V(f's_mov_b32 exec_lo, 0x33333333\ns_mov_b32 exec_hi, 0x33333333\n'
      f'buffer_store_dwordx2 {v(stt, 2)}, {v(vgr)}, {s(WS, 4)}, s{T0} offen{FLAGM}\ns_mov_b64 exec, -1')
    weave(P, list(pre.q), V.q, len(V.q) // (len(pre.q) + 3))
    for o in V.q:
        o()
    stamp(P, 4)

    def poll_gran():
        for k in range(8):
            P(f'buffer_load_dwordx2 {v(GR + 2 * k, 2)}, {v(vgl)}, {s(WS, 4)}, s{GO} offen offset:{256 * k}{FLAGM}')

    def z1_reads(E, ks):
        for b in range(3):
            ldsb(E, Bf[ks & 1][b], (ks * 3 + b) * 1024)

    def z1_steps(k0, k1):
        for ks in range(k0, k1):
            side = Rec(P)
            P('s_waitcnt lgkmcnt(0)')
            if ks + 1 < 20:
                z1_reads(side, ks + 1)
            if ks == KW_POLL:
                poll_gran()
            main = [lambda b=b, mb=mb: mfma(P, v(acc1[mb][b], 4), v(Bf[ks & 1][b], 4), a(Af[mb][ks], 4),
                                            v(acc1[mb][b], 4) if ks else '0') for b in range(3) for mb in range(2)]
            weave(P, main, side.q, 1)

    def z1_gelu(n):
        xs, dst = [([acc1[0][0], acc1[0][0] + 2, acc1[0][1], acc1[0][1] + 2], pk[0]),
                   ([acc1[1][0], acc1[1][0] + 2, acc1[1][1], acc1[1][1] + 2], pk[1]),
                   ([acc1[0][2], acc1[0][2] + 2, acc1[1][2], acc1[1][2] + 2], pk[2])][n]
        gelu_group(P, xs, tmp, C1, vc0)
        for k, x in enumerate(xs):
            P(f'v_cvt_pk_bf16_f32 {v(dst + k)}, {v(x)}, {v(x + 1)}')

    P.need('Y')
    P('s_barrier')
    z1_reads(P, 0)
    z1_steps(0, KW_Z1A)
    stamp(P, 5)
    spin('kg_g', poll_gran, no_sentinel(range(GR, GR + 16)))
    stamp(P, 6)
    for st_ in (4, 2, 1):
        for k in range(st_):
            P(f'v_pk_add_f32 {v(GR + 2 * k, 2)}, {v(GR + 2 * k, 2)}, {v(GR + 2 * (k + st_), 2)}')
    for e in range(2):
        P(f'v_mov_b32 {v(GR + 2 + e)}, {v(GR + e)}')
    for e in range(2):
        P(f'v_permlane32_swap_b32 {v(GR + e)}, {v(GR + 2 + e)}')
    P(f'v_pk_add_f32 {v(GR, 2)}, {v(GR, 2)}, {v(GR + 2, 2)}')
    ln_finish(P, [(GR, GR + 1)], FH, [tmp])
    P(f'ds_write_b32 {v(vtw)}, {v(GR)}')
    P(f'ds_write_b32 {v(vtw)}, {v(GR + 1)} offset:128')
    for mb in range(2):
        P(f'ds_read_b128 {v(stt + 4 * mb, 4)}, {v(vtr)} offset:{64 * mb}')
        P(f'ds_read_b128 {v(stt + 8 + 4 * mb, 4)}, {v(vtr)} offset:{128 + 64 * mb}')
    P(f's_lshr_b32 s{T0}, s{JT}, 1')
    P(f's_lshl_b32 s{T0}, s{T0}, 6')
    P(f's_add_u32 s{T2}, s{T0}, s{RW}')
    P(f's_mul_i32 s{T0}, s{T2}, 7168')
    P(f's_add_u32 s{T0}, s{T0}, {Z2_OFF}')
    P(f's_lshl_b32 s{T1}, s{PAR}, 11')
    P(f's_add_u32 s{AO}, s{T0}, s{T1}')
    P(f's_lshl_b32 s{T1}, s{PAR}, 10')
    P(f's_add_u32 s{T1}, s{T0}, s{T1}')
    P(f's_add_u32 s{T1}, s{T1}, 4096')
    P(f's_add_u32 s{T0}, s{T0}, 6144')
    for b in range(4):
        xs = [acc2[0][b], acc2[0][b] + 2, acc2[1][b], acc2[1][b] + 2]
        for k, x in enumerate(xs):
            P(f'v_pk_fma_f32 {v(x, 2)}, {v(x, 2)}, {v(stt + 8 + 2 * k, 2)}, {v(stt + 2 * k, 2)}')
        for k, x in enumerate(xs):
            P(f'v_cvt_pk_bf16_f32 {v(pk[4 + b] + k)}, {v(x)}, {v(x + 1)}')
        if b < 2:
            P(f'buffer_store_dwordx4 {v(pk[4 + b], 4)}, {v(vl16)}, {s(WS, 4)}, s{AO} offen offset:{1024 * b} sc1', tw=['Z'])
        elif b == 2:
            P(f'buffer_store_dwordx4 {v(pk[4 + b], 4)}, {v(vl16)}, {s(WS, 4)}, s{T1} offen sc1', tw=['Z'])
        else:
            P(f's_mov_b64 exec, {s(XM, 2)}')
            P(f'buffer_store_dwordx4 {v(pk[4 + b], 4)}, {v(vl16)}, {s(WS, 4)}, s{T0} offen sc1', tw=['Z'])
            P('s_mov_b64 exec, -1')
    stamp(P, 7)
    z1_steps(KW_Z1A, 20)
    for n in range(KW_G1):
        z1_gelu(n)

    def z1_rest():
        for n in range(KW_G1, 3):
            z1_gelu(n)

    def z1_store():
        P(f's_mul_i32 s{T0}, s{RW}, {2 * 112 * 256}')
        P(f's_lshr_b32 s{T1}, s{JT}, 1')
        P(f's_mul_i32 s{T1}, s{T1}, {14 * 256}')
        P(f's_add_u32 s{T0}, s{T0}, s{T1}')
        P(f's_add_u32 s{T0}, s{T0}, {Z1_OFF}')
        P(f's_lshl_b32 s{T1}, s{PAR}, 10')
        P(f's_add_u32 s{AO}, s{T0}, s{T1}')
        P(f's_lshl_b32 s{T1}, s{PAR}, 9')
        P(f's_add_u32 s{T1}, s{T0}, s{T1}')
        P(f's_lshl_b32 s{XO}, s{PAR}, 8')
        P(f's_add_u32 s{T0}, s{T0}, s{XO}')
        for tb in range(2):
            P(f'buffer_store_dwordx4 {v(pk[tb], 4)}, {v(vl16)}, {s(WS, 4)}, s{AO} offen sc1', tw=['Z1'])
            P(f'buffer_store_dwordx2 {v(pk[2] + 2 * tb, 2)}, {v(vl8)}, {s(WS, 4)}, s{T1} offen offset:2048 sc1', tw=['Z1'])
            P('s_mov_b32 exec_hi, 0')
            P(f'buffer_store_dwordx2 {v(pk[3] + 2 * tb, 2)}, {v(vl8)}, {s(WS, 4)}, s{T0} offen offset:3072 sc1', tw=['Z1'])
            P('s_mov_b32 exec_hi, -1')
            if tb == 0:
                for r in (AO, T1, T0):
                    P(f's_add_u32 s{r}, s{r}, {112 * 256}')

    def handoff(name, tok, nlane, wr_off, rd_off, FL, st, between=None):
        def lanes():
            P(f's_mov_b32 exec_lo, {(1 << nlane) - 1:#x}' if nlane < 32 else 's_mov_b32 exec_lo, -1')
            P('s_mov_b32 exec_hi, 0')

        P(f'v_mov_b32 {v(FL)}, 0')
        P(f'v_lshlrev_b32 {v(vu)}, 7, {v(vl)}')
        P.need(tok)
        P('s_barrier')
        stamp(P, st)
        P(f's_cmp_lg_u32 s{W}, 0')
        P(f's_cbranch_scc1 {name}_sent')
        P('s_mov_b64 exec, 1')
        P(f'buffer_store_dword {v(FL)}, {v(FL)}, {s(WS, 4)}, s{wr_off} offen{FLAGM}')
        P('s_mov_b64 exec, -1')
        P.label(f'{name}_sent')
        if between:
            between()
        P(f's_cmp_lg_u32 s{W}, 0')
        P(f's_cbranch_scc1 {name}_ok')
        lanes()

        def poll():
            P(f'buffer_load_dword {v(FL + 1)}, {v(vu)}, {s(WS, 4)}, s{rd_off} offen{FLAGM}')

        poll()
        spin(name, poll, no_sentinel([FL + 1]))
        P('s_mov_b64 exec, -1')
        P('s_barrier')

    FL = GR
    A = Alloc(BASE, 256)
    FLS = A.get(2)
    accS = [[A.get(4) for b in range(7)] for mb in range(2)]
    BfS = [[A.get(4) for b in range(7)] for _ in range(2)]
    AfS = [[A.get(4) for mb in range(2)] for _ in range(2)]
    Z1 = [A.get(16) for _ in range(2)]
    OUT = [A.get(12) for _ in range(2)]
    OX = A.get(4)
    vbs = [A.get(2) for _ in range(2)]
    tmp = A.get(8)
    vxo = A.get()
    P(f's_lshr_b32 s{T0}, s{JT}, 1')
    P(f's_lshr_b32 s{T1}, s{RW}, 2')
    P(f's_lshl4_add_u32 s{T2}, s{T0}, s{T1}')
    P(f's_lshl1_add_u32 s{T2}, s{T2}, s{PAR}')
    P(f's_lshl_b32 s{T2}, s{T2}, 7')
    P(f's_add_u32 s{T2}, s{T2}, {FL1_OFF}')
    P(f's_lshl_b32 s{GO}, s{J}, 12')
    P(f's_add_u32 s{GO}, s{GO}, {FL1_OFF}')
    srd(P, MS, KA_BSP, 4096)
    P(f's_lshl1_add_u32 s{T0}, s{J}, s{H}')
    P(f's_mul_i32 s{T0}, s{T0}, {32 * 7168}')
    P(f's_add_u32 s{T0}, s{T0}, {Z2_OFF}')
    tile_srd(P, T0, KS_A)
    P(f's_mul_i32 s{UO}, s{RW}, {2 * 112 * 256}')
    P(f's_mul_i32 s{T1}, s{J}, {14 * 256}')
    P(f's_add_u32 s{UO}, s{UO}, s{T1}')
    P('s_waitcnt lgkmcnt(0)')
    handoff('kg_f', 'Z', 32, T2, GO, FL, 8, z1_rest)
    stamp(P, 9)
    nb[0] = 0

    def issueB(E, k):
        while nb[0] < (7 * (k + 1) + 3) // 4:
            i = nb[0]
            if i and (4096 * i) % KS_A == 0:
                E(f's_add_u32 s{BS}, s{BS}, {KS_A}\ns_addc_u32 s{BS + 1}, s{BS + 1}, 0')
            E(f's_add_u32 m0, s{W10}, {(4096 * i) % KS_A}')
            E(f'buffer_load_dwordx4 {v(vl16)}, {s(BS, 4)}, m0 offen sc1 lds', tw=[f'B{i}'])
            nb[0] += 1

    LEAD = KS_LEAD
    for k in range(LEAD):
        issueB(P, k)
        if k == 1:
            z1_store()

    def syncS(k):
        P.need(*[f'A{q}' for q in range((k >> 1) + 1)], *[f'B{i}' for i in range((7 * (k + 1) + 3) // 4)])
        P('s_barrier')

    def readsS(E, k):
        for mb in range(2):
            for e in range(2):
                E(f'ds_read_b64 {v(AfS[k & 1][mb] + 2 * e, 2)}, {v(var[2 * (k & 1) + e])} offset:{((k >> 1) % 4) * 4096 + 2048 * mb}')
        for b in range(7):
            ldsb(E, BfS[k & 1][b], (k % KS_RB) * 7168 + 1024 * b)

    syncS(0)
    readsS(P, 0)

    def poll_z1():
        P(f'buffer_load_dword {v(FLS + 1)}, {v(FLS)}, {s(WS, 4)}, s{GO} offen{FLAGM}')

    stamp(P, 10)
    for k in range(32):
        if k == 16:
            stamp(P, 11)
        side = Rec(P)
        if k == 29 - LEAD:
            P(f's_lshr_b32 s{T0}, s{RW}, 2')
            P(f's_lshl4_add_u32 s{GO}, s{J}, s{T0}')
            P(f's_lshl_b32 s{GO}, s{GO}, 8')
            P(f's_add_u32 s{GO}, s{GO}, {FL0_OFF}')
            P(f'v_and_b32 {v(FLS)}, 1, v0')
            P(f'v_lshlrev_b32 {v(FLS)}, 7, {v(FLS)}')
            poll_z1()
        if k == 33 - LEAD:
            spin('kg_y', poll_z1, no_sentinel([FLS + 1]))
        if k + 1 < 32:
            if k % KS_SYNC == 0:
                if k == 8:
                    P.need('Z1')
                syncS(min(k + KS_SYNC, 31))
            if k == 8:
                P(f's_cmp_lg_u32 s{W}, 0')
                P('s_cbranch_scc1 kg_z1sent')
                P(f's_add_u32 s{T2}, s{T2}, {FL0_OFF - FL1_OFF}')
                P(f'v_mov_b32 {v(FLS)}, 0')
                P('s_mov_b64 exec, 1')
                P(f'buffer_store_dword {v(FLS)}, {v(FLS)}, {s(WS, 4)}, s{T2} offen{FLAGM}')
                P('s_mov_b64 exec, -1')
                P.label('kg_z1sent')
            P('s_waitcnt lgkmcnt(0)')
            readsS(side, k + 1)
        if k + LEAD < 32:
            if (k + LEAD) % 2 == 0:
                issueA(side, (k + LEAD) // 2)
            issueB(side, k + LEAD)
        if k == 32 - LEAD:
            side(f's_lshl_b32 s{T1}, s{RW}, 6')
            side(f'v_lshlrev_b32 {v(vt)}, 1, {v(vh)}')
            for tb in range(2):
                side(f'buffer_load_ushort {v(vbs[tb])}, {v(vt)}, {s(MS, 4)}, s{T1} offen offset:{32 * tb}')
            side(f's_add_u32 s{T0}, s{UO}, {Z1_OFF}')
        if 0 <= k - (33 - LEAD) < 2:
            tb = k - (33 - LEAD)
            for jj in range(2):
                side(f'buffer_load_dwordx4 {v(Z1[tb] + 4 * jj, 4)}, {v(vl16)}, {s(WS, 4)}, s{T0} offen offset:{1024 * jj} sc1')
            for jj in range(3):
                side(f'buffer_load_dwordx2 {v(Z1[tb] + 8 + 2 * jj, 2)}, {v(vl8)}, {s(WS, 4)}, s{T0} offen offset:{2048 + 512 * jj} sc1')
            side(f's_add_u32 s{T0}, s{T0}, {112 * 256}')
        main = [lambda b=b, mb=mb: mfma(P, v(accS[mb][b], 4), v(BfS[k & 1][b], 4), v(AfS[k & 1][mb], 4),
                                        v(accS[mb][b], 4) if k else '0') for b in range(7) for mb in range(2)]
        weave(P, main, side.q, 2)
        for o in side.q:
            o()
    stamp(P, 12)
    P(f's_bfe_u32 s{T0}, s2, 0x10002')
    P(f's_lshr_b32 s{T1}, s2, 6')
    P(f's_lshl2_add_u32 s{JT}, s{T0}, s{T1}')
    P(f's_mul_i32 s{T0}, s{JT}, 143360')
    P(f's_add_u32 s{T0}, s{T0}, {WOUT_OFF}')
    tile_srd(P, T0, 143360)
    P(f's_mov_b32 m0, s{W10}')
    P(f's_mul_i32 s{T0}, s{H}, {U_HALF}')
    P(f's_add_u32 s{UO}, s{UO}, s{T0}')
    P(f's_add_u32 s{UO}, s{UO}, {U_OFF}')
    P(f's_add_u32 s{T1}, s{UO}, {112 * 256}')
    P(f's_sub_u32 s{T0}, s{H}, 1')
    P(f'v_lshrrev_b32 {v(vt)}, 1, {v(vg)}')
    P(f'v_lshl_add_u32 {v(vt)}, {v(vt)}, 4, {v(vh)}')
    P(f'v_and_b32 {v(vu)}, 1, {v(vg)}')
    P(f'v_mul_u32_u24 {v(vu)}, {112 * 256}, {v(vu)}')
    P(f'v_lshl_add_u32 {v(vxo)}, {v(vt)}, 4, {v(vu)}')
    for tb in range(2):
        P(f'v_lshlrev_b32 {v(vbs[tb])}, 16, {v(vbs[tb])}')
        P(f'v_and_b32 {v(vbs[tb])}, s{T0}, {v(vbs[tb])}')
    P('s_barrier')
    nb[0] = 0
    pre = Rec(P)
    for i in range(35):
        one = Rec(P)
        dma_upto(one, i + 1, 'O')
        pre.q.append(lambda q=one.q: [o() for o in q])
    V = Rec(P)
    for b, tb in [(6, 0), (6, 1)] + [(b, tb) for tb in range(2) for b in range(6)]:
        dst = OX + 2 * tb if b == 6 else OUT[tb] + 2 * b
        for h in range(2):
            x = accS[tb][b] + 2 * h
            t = tmp + 4 * (b & 1 ^ tb) + 2 * h
            unpack(V, t, t + 1, Z1[tb] + 2 * b + h)
            V(f'v_pk_add_f32 {v(x, 2)}, {v(x, 2)}, {v(vbs[tb], 2)} op_sel_hi:[1,0]')
        for h in range(2):
            x = accS[tb][b] + 2 * h
            t = tmp + 4 * (b & 1 ^ tb) + 2 * h
            V(f'v_pk_mul_f32 {v(x, 2)}, {v(x, 2)}, {v(t, 2)}')
        for h in range(2):
            x = accS[tb][b] + 2 * h
            V(f'v_cvt_pk_bf16_f32 {v(dst + h)}, {v(x)}, {v(x + 1)}')
        if b == 0 and tb == 0:
            for h in range(2):
                V(f'v_permlane16_swap_b32 {v(OX + h)}, {v(OX + 2 + h)}')
            V(f'buffer_store_dwordx4 {v(OX, 4)}, {v(vxo)}, {s(WS, 4)}, s{UO} offen offset:3072 sc1', tw=['U'])
        if b < 6 and b & 1:
            V(f'buffer_store_dwordx4 {v(OUT[tb] + 2 * b - 2, 4)}, {v(vl16)}, {s(WS, 4)}, s{(UO, T1)[tb]} offen offset:{512 * (b - 1)} sc1', tw=['U'])
    npre = KO_PRE
    weave(P, pre.q[:npre], V.q, len(V.q) // npre + 1)
    for o in V.q:
        o()
    stamp(P, 13)
    A = Alloc(BASE, 256)
    FL = A.get(2)
    vu1, vw, vr, vo, vo2, vgb = [A.get() for _ in range(6)]
    accO = [[A.get(4) for nb_ in range(5)] for h in range(2)]
    BfO = [[A.get(4) for nb_ in range(5)] for _ in range(2)]
    GB = A.get(8)
    X1 = [A.get(4) for _ in range(3)]
    RD = [A.get(8) for _ in range(3)]
    tmp = A.get(8)
    Uf = [[(ks * 2 + h) * 4 for h in range(2)] for ks in range(28)]
    for o in pre.q[npre:npre + KO_PRE2]:
        o()
    P(f's_lshl1_add_u32 s{T2}, s{J}, s{H}')
    P(f's_lshr_b32 s{T0}, s{RW}, 2')
    P(f's_lshl4_add_u32 s{T2}, s{T0}, s{T2}')
    P(f's_lshl_b32 s{T2}, s{T2}, 7')
    P(f's_add_u32 s{T2}, s{T2}, {FL2_OFF}')
    srd(P, MS, KA_OUT, S * 1280)
    P(f's_and_b32 s{T0}, s2, 3')
    P(f's_bfe_u32 s{T1}, s2, 0x30003')
    P(f's_lshl3_add_u32 s{T0}, s{T0}, s{T1}')
    P(f's_lshl2_add_u32 s{RB}, s{T0}, s{W}')
    P(f's_lshr_b32 s{GO}, s{T0}, 1')
    P(f's_lshl_b32 s{GO}, s{GO}, 11')
    P(f's_add_u32 s{GO}, s{GO}, {FL2_OFF}')
    assert all((t * 6554) >> 16 == t // 10 for t in range(64))
    P(f'v_add_u32 {v(vu1)}, {U_HALF}, {v(vl16)}')
    P(f's_mul_i32 s{UO}, s{RB}, {112 * 256}')
    P(f's_add_u32 s{UO}, s{UO}, {U_OFF}')
    P(f'v_mul_u32_u24 {v(vt)}, 6554, {v(vl)}')
    P(f'v_lshrrev_b32 {v(vt)}, 16, {v(vt)}')
    P(f'v_mul_u32_u24 {v(vgb)}, 10, {v(vt)}')
    P(f'v_sub_u32 {v(vgb)}, {v(vl)}, {v(vgb)}')
    P(f's_mul_i32 s{T0}, s{W}, {16 * KO_RS}')
    P(f'v_mul_u32_u24 {v(vr)}, {KO_RS}, {v(vt)}')
    P(f'v_lshl_add_u32 {v(vr)}, {v(vgb)}, 5, {v(vr)}')
    P(f'v_add_u32 {v(vr)}, s{T0}, {v(vr)}')
    P(f'v_mul_u32_u24 {v(vo)}, 1280, {v(vt)}')
    P(f'v_lshl_add_u32 {v(vo)}, {v(vgb)}, 4, {v(vo)}')
    P(f'v_lshlrev_b32 {v(vgb)}, 5, {v(vgb)}')
    P(f'v_mov_b32 {v(vt)}, {OOB:#x}')
    P(f'v_cmp_gt_u32 vcc, 40, {v(vl)}')
    P(f'v_cndmask_b32 {v(vo2)}, {v(vt)}, {v(vo)}, vcc')
    P(f'v_cmp_gt_u32 vcc, 60, {v(vl)}')
    P(f'v_cndmask_b32 {v(vo)}, {v(vt)}, {v(vo)}, vcc')
    P(f'v_mul_u32_u24 {v(vw)}, {KO_RS}, {v(vh)}')
    P(f'v_lshl_add_u32 {v(vw)}, {v(vg)}, 4, {v(vw)}')
    P(f'v_add_u32 {v(vw)}, s{T0}, {v(vw)}')
    P(f's_mul_i32 s{XO}, s{RB}, {16 * 1280}')
    P(f's_mul_i32 s{T0}, s{JT}, 160')
    P(f's_add_u32 s{XO}, s{XO}, s{T0}')
    P(f's_lshl_b32 s{T0}, s{T0}, 1')
    P(f's_add_u32 s{T0}, s{T0}, {MOD_OFF + 5 * 2560}')
    P(f's_add_u32 s{T1}, s{XO}, {X1_OFF}')
    P('s_waitcnt lgkmcnt(0)')
    handoff('kg_u', 'U', 16, T2, GO, FL, 14, lambda: [o() for o in pre.q[npre + KO_PRE2:]])
    stamp(P, 15)

    def issueU(E, ks):
        for h in range(2):
            E(f'buffer_load_dwordx4 {a(Uf[ks][h], 4)}, {v((vl16, vu1)[h])}, {s(WS, 4)}, s{UO} offen offset:{1024 * (ks % 4)} sc1')
        if ks % 4 == 3:
            E(f's_add_u32 s{UO}, s{UO}, 4096')

    LEAD = KO_LEAD
    for ks in range(LEAD):
        issueU(P, ks)
    P.need(*[f'O{i}' for i in range(35)])
    P('s_barrier')

    def readsO(E, ks):
        for nb_ in range(5):
            ldsb(E, BfO[ks & 1][nb_], (ks * 5 + nb_) * 1024)

    readsO(P, 0)
    stamp(P, 16)
    for ks in range(28):
        side = Rec(P)
        if ks + 1 < 28:
            P('s_waitcnt lgkmcnt(0)')
            readsO(side, ks + 1)
        if ks + LEAD < 28:
            issueU(side, ks + LEAD)
        if ks == 28 - LEAD:
            for k in range(2):
                side(f'buffer_load_dwordx4 {v(GB + 4 * k, 4)}, {v(vgb)}, {s(WS, 4)}, s{T0} offen offset:{16 * k}')
            for r in range(3):
                side(f'buffer_load_dwordx4 {v(X1[r], 4)}, {v(vo if r < 2 else vo2)}, {s(WS, 4)}, s{T1} offen')
                if r < 2:
                    side(f's_add_u32 s{T1}, s{T1}, {6 * 1280}')
        if ks == 8:
            P('s_barrier')
        main = [lambda nb_=nb_, h=h: mfma(P, v(accO[h][nb_], 4), v(BfO[ks & 1][nb_], 4), a(Uf[ks][h], 4),
                                          v(accO[h][nb_], 4) if ks else '0') for nb_ in range(5) for h in range(2)]
        weave(P, main, side.q, 1)
        for o in side.q:
            o()
    stamp(P, 17)
    for nb_ in range(5):
        for h in range(2):
            P(f'v_pk_add_f32 {v(accO[0][nb_] + 2 * h, 2)}, {v(accO[0][nb_] + 2 * h, 2)}, {v(accO[1][nb_] + 2 * h, 2)}')
        P(f'ds_write_b128 {v(vw)}, {v(accO[0][nb_], 4)} offset:{64 * nb_}')
    for r in range(3):
        for k in range(2):
            P(f'ds_read_b128 {v(RD[r] + 4 * k, 4)}, {v(vr)} offset:{r * 6 * KO_RS + 16 * k}')
    for r in range(3):
        for k in range(4):
            unpack(P, tmp + 2 * k, tmp + 2 * k + 1, X1[r] + k)
        for k in range(4):
            P(f'v_pk_fma_f32 {v(RD[r] + 2 * k, 2)}, {v(RD[r] + 2 * k, 2)}, {v(GB + 2 * k, 2)}, {v(tmp + 2 * k, 2)}')
        for k in range(4):
            P(f'v_cvt_pk_bf16_f32 {v(X1[r] + k)}, {v(RD[r] + 2 * k)}, {v(RD[r] + 2 * k + 1)}')
        P(f'buffer_store_dwordx4 {v(X1[r], 4)}, {v(vo if r < 2 else vo2)}, {s(MS, 4)}, s{XO} offen{WTO}')
        if r < 2:
            P(f's_add_u32 s{XO}, s{XO}, {6 * 1280}')
    stamp(P, 18)
    endpgm(P, 19)
    P.label('kg_done')
    P('s_endpgm')
    return P


PREFETCH = True
WTO = ' sc1'
FLAGM = ' sc0 sc1'
SLEEP = 2
KW_POLL, KW_Z1A, KW_G1, KW_YRATE = 7, 14, 2, 1
KW_LEAD, KW_SYNC, KS_LEAD, KS_SYNC, KO_LEAD, KO_PRE, KO_PRE2 = 5, 2, 6, 2, 10, 8, 10


def build(path):
    ks = [(gen_ka(), KA_GRID, 512, KA_LDS), (gen_kb(), 256, 512, KB_LDS), (gen_kg(), 256, 256, KG_LDS)]
    out = HEADER
    for P, g, b, l in ks:
        out += f'; @launch kernel={P.name} grid=({g},1,1) block=({b},1,1) lds={l}\n'
    out += '.amdgcn_target "amdgcn-amd-amdhsa--gfx950"\n.text\n'
    for P, g, b, l in (ks[0], ks[2], ks[1]):
        P.finish()
        out += P.text()
        print(P.name, 'instrs', len(P.items), 'regs', P.maxregs(), file=sys.stderr)
    out += '.p2align 8\n.type ctab,@object\nctab:\n'
    t = tables()
    for i in range(0, len(t), 8):
        out += '.long ' + ','.join('0x%x' % x for x in t[i:i + 8]) + '\n'
    out += f'.size ctab, {CT_SIZE}\ncode_end:\n'
    out += '.section .rodata,"a"\n'
    for P, g, b, l in ks:
        out += P.descriptor()
    open(path, 'w').write(out)


if __name__ == '__main__':
    PROF = '--prof' in sys.argv
    for arg in sys.argv[1:]:
        if '=' in arg:
            k_, v_ = arg.split('=')
            globals()[k_] = int(v_) if v_.lstrip('-').isdigit() else v_.replace('_', ' ')
    paths = [x for x in sys.argv[1:] if x.endswith('.s')]
    build(paths[0] if paths else 'cdna_kernels/' + NAME + '.s')
```

```python
import sys
from asmlib import *
from layout import *

OOB = 0x80000000
NAME = 'adaLN_cond__spectral_fnet__mixer_gmlp__prompt'
HEADER = open('cdna_kernels/' + NAME + '.s.ref').read().split('; Override launch')[0]
LOG2E = 1.4426950408889634


def srd(P, R, kaoff, size):
    P(f's_load_dwordx2 {s(R, 2)}, s[0:1], {kaoff}')
    P(f's_mov_b32 {s(R + 2)}, {size}')
    P(f's_mov_b32 {s(R + 3)}, 0x20000')


def pcsrd(P, R, sym, size, back=False):
    lab = P.newlabel('pc')
    P(f's_getpc_b64 {s(R, 2)}')
    P.label(lab)
    if back:
        P(f's_sub_u32 {s(R)}, {s(R)}, {lab}-{sym}')
        P(f's_subb_u32 {s(R + 1)}, {s(R + 1)}, 0')
    else:
        P(f's_add_u32 {s(R)}, {s(R)}, {sym}-{lab}')
        P(f's_addc_u32 {s(R + 1)}, {s(R + 1)}, 0')
    P(f's_mov_b32 {s(R + 2)}, {size}')
    P(f's_mov_b32 {s(R + 3)}, 0x20000')


def code_prefetch(P, R, vtmp, vdst, first, last, nthreads, nloads, guard=True, back=False):
    skip = P.newlabel('nopf')
    if guard:
        P('s_cmp_ge_u32 s2, 8')
        P(f's_cbranch_scc1 {skip}')
    pcsrd(P, R, first, f'{last}-{first}', back)
    P(f'v_lshlrev_b32 {v(vtmp)}, 6, v0')
    for i in range(nloads):
        if i:
            P(f'v_add_u32 {v(vtmp)}, {nthreads * 64}, {v(vtmp)}')
        P(f'buffer_load_dword {v(vdst + i)}, {v(vtmp)}, {s(R, 4)}, 0 offen')
    P.label(skip)


PROF = False
EXP = 0
RT = 0
WT = ' sc1'
PROF_OFF = WS_END
PROF_KID = {'ka_kernel': 0, 'kb_kernel': 1, 'kg_kernel': 2}
SB = 44


def stamp(P, i):
    if PROF:
        P(f'{"s_memrealtime" if RT else "s_memtime"} {s(SB + 4 + 2 * i, 2)}')
        if i == 0:
            P(f's_memrealtime {s(SB, 2)}')


def endpgm(P, n=0, ws=4):
    if PROF and n:
        P('s_waitcnt vmcnt(0)')
        stamp(P, n)
        P(f's_memrealtime {s(SB + 2, 2)}')
        P('s_waitcnt lgkmcnt(0)')
        P(f's_mov_b32 s{ws + 2}, {PROF_OFF + (5 << 20)}')
        P('v_lshrrev_b32 v1, 6, v0')
        P(f's_lshl_b32 s{SB + 1}, s2, 3')
        P(f'v_add_u32 v1, s{SB + 1}, v1')
        P('v_lshlrev_b32 v1, 7, v1')
        P(f's_mov_b32 s{SB + 1}, {PROF_OFF + (PROF_KID[P.name] << 20)}')
        P('s_mov_b64 exec, 1')
        P(f's_getreg_b32 s{SB + 3}, hwreg(HW_REG_XCC_ID)')
        P(f'v_mov_b32 v2, s{SB + 3}')
        P(f'buffer_store_dword v2, v1, {s(ws, 4)}, s{SB + 1} offen offset:124')
        regs = [SB, SB + 2] + [SB + 4 + 2 * i for i in range(n + 1)]
        for k, r in enumerate(regs):
            P(f'v_mov_b32 v2, s{r}')
            P(f'buffer_store_dword v2, v1, {s(ws, 4)}, s{SB + 1} offen offset:{4 * k}')
    P('s_endpgm')


def mfma(P, d, x, y, c):
    P(f'v_mfma_f32_16x16x32_bf16 {d}, {x}, {y}, {c}')


def unpack(P, lo, hi, src):
    P(f'v_lshlrev_b32 {v(lo)}, 16, {v(src)}')
    P(f'v_and_b32 {v(hi)}, 0xffff0000, {v(src)}')


def dpp_add(P, d, x, y, ctl, row=0xf, bank=0xf):
    P(f'v_add_f32_dpp {v(d)}, {v(x)}, {v(y)} {ctl} row_mask:{row:#x} bank_mask:{bank:#x}')


def ln_finish(P, pairs, n, tmps):
    for (sm, sq), t in zip(pairs, tmps):
        P(f'v_mul_f32 {v(sm)}, {fl(-1.0 / n)}, {v(sm)}')
        P(f'v_mul_f32 {v(sq)}, {fl(1.0 / n)}, {v(sq)}')
    for (sm, sq), t in zip(pairs, tmps):
        P(f'v_fma_f32 {v(sq)}, -{v(sm)}, {v(sm)}, {v(sq)}')
    for (sm, sq), t in zip(pairs, tmps):
        P(f'v_max_f32 {v(sq)}, 0, {v(sq)}')
    for (sm, sq), t in zip(pairs, tmps):
        P(f'v_add_f32 {v(sq)}, {fl(1e-5)}, {v(sq)}')
    for (sm, sq), t in zip(pairs, tmps):
        P(f'v_rsq_f32 {v(sq)}, {v(sq)}')
    for (sm, sq), t in zip(pairs, tmps):
        P(f'v_mul_f32 {v(sm)}, {v(sm)}, {v(sq)}')


KA_PF, KA_FT, KA_GV, KA_WO, KA_END, KA_GRID = 0, 8, 168, 228, 256, 256
KA_LDS = 32 * 1296


def gen_ka():
    P = Prog('ka_kernel')
    WS, SRC, TB = 4, 8, 12
    T0, T1, T2, T3 = 18, 19, 20, 21
    stamp(P, 0)
    srd(P, WS, KA_WS, WS_END)
    P(f's_sub_u32 s{T0}, s2, {KA_FT}')
    P(f's_cmp_ge_u32 s{T0}, {KA_GV - KA_FT}')
    P('s_cbranch_scc1 ka_other')

    srd(P, SRC, KA_X, S * 1280)
    S1, CS = 16, 17
    P(f's_lshr_b32 s{T1}, s{T0}, 3')
    P(f's_and_b32 s{S1}, s{T0}, 7')
    P(f's_and_b32 s{T2}, s{T1}, 3')
    P(f's_lshl3_add_u32 s{S1}, s{T2}, s{S1}')
    P(f's_lshr_b32 s{CS}, s{T1}, 2')
    A = Alloc(1, 128)
    vj, vrow, vc, vt, vu = [A.get() for _ in range(5)]
    addr = [A.get() for _ in range(5)]
    X = [[A.get(4) for _ in range(5)] for _ in range(2)]
    FA = [A.get(4) for _ in range(2)]
    st = [A.get() for _ in range(4)]
    one = A.get()
    tmp = [A.get() for _ in range(4)]
    Dm = [A.get(4) for _ in range(4)]
    PK = A.get(8)
    P(f'v_and_b32 {v(vj)}, 15, v0')
    P(f'v_lshrrev_b32 {v(vrow)}, 4, v0')
    P(f's_mul_i32 s{T0}, s{S1}, 1280')
    P(f's_lshl_b32 s{T2}, s{CS}, 8')
    P(f'v_lshl_add_u32 {v(vc)}, {v(vj)}, 4, s{T2}')
    P(f'v_mul_u32_u24 {v(vt)}, 40960, {v(vrow)}')
    P(f's_add_u32 s{T1}, s{T0}, {32 * 40960}')
    for i in range(5):
        r = addr[i]
        if i:
            P(f'v_add_u32 {v(r)}, {(256 * i - 1280) & 0xffffffff:#x}, {v(vc)}')
            P(f'v_add_u32 {v(vu)}, {256 * i}, {v(vc)}')
            P(f'v_min_u32 {v(r)}, {v(r)}, {v(vu)}')
        P(f'v_add_u32 {v(r)}, {v(r if i else vc)}, {v(vt)}')
        P(f'buffer_load_dwordx4 {v(X[0][i], 4)}, {v(r)}, {s(SRC, 4)}, s{T0} offen')
    for i in range(5):
        P(f'buffer_load_dwordx4 {v(X[1][i], 4)}, {v(addr[i])}, {s(SRC, 4)}, s{T1} offen')
    pcsrd(P, TB, f'ctab+{CT_FA}', 8192)
    P(f'v_and_b32 {v(vu)}, 63, v0')
    P(f'v_bfe_u32 {v(vt)}, v0, 6, 2')
    P(f'v_lshlrev_b32 {v(vu)}, 4, {v(vu)}')
    P(f'v_lshl_add_u32 {v(vu)}, {v(vt)}, 11, {v(vu)}')
    for ks in range(2):
        P(f'buffer_load_dwordx4 {v(FA[ks], 4)}, {v(vu)}, {s(TB, 4)}, 0 offen offset:{1024 * ks}')
    stamp(P, 1)
    P(f'v_mov_b32 {v(one)}, 0x3f803f80')
    for r in st:
        P(f'v_mov_b32 {v(r)}, 0')
    XR, SC, SR = 264, 64 * 264, 144
    vw, vr, vs, vsw, vsr = addr
    P(f'v_mul_u32_u24 {v(vw)}, {XR}, {v(vrow)}')
    P(f'v_lshl_add_u32 {v(vw)}, {v(vj)}, 4, {v(vw)}')
    P(f'v_bfe_u32 {v(vr)}, v0, 2, 4')
    P(f'v_mul_u32_u24 {v(vr)}, {XR}, {v(vr)}')
    P(f'v_and_b32 {v(vt)}, 3, v0')
    P(f'v_lshl_add_u32 {v(vr)}, {v(vt)}, 5, {v(vr)}')
    P(f'v_lshrrev_b32 {v(vt)}, 8, v0')
    P(f'v_lshl_add_u32 {v(vr)}, {v(vt)}, 7, {v(vr)}')
    P(f'v_lshrrev_b32 {v(vu)}, 6, v0')
    P(f'v_mul_u32_u24 {v(vu)}, {16 * SR}, {v(vu)}')
    P(f'v_add_u32 {v(vu)}, {SC}, {v(vu)}')
    P(f'v_mul_u32_u24 {v(vsw)}, {SR}, {v(vj)}')
    P(f'v_bfe_u32 {v(vc)}, v0, 4, 2')
    P(f'v_lshl_add_u32 {v(vsw)}, {v(vc)}, 5, {v(vsw)}')
    P(f'v_add_u32 {v(vsw)}, {v(vsw)}, {v(vu)}')
    P(f'v_bfe_u32 {v(vc)}, v0, 3, 3')
    P(f'v_mul_u32_u24 {v(vsr)}, {SR}, {v(vc)}')
    P(f'v_and_b32 {v(vj)}, 7, v0')
    P(f'v_lshl_add_u32 {v(vsr)}, {v(vj)}, 4, {v(vsr)}')
    P(f'v_add_u32 {v(vsr)}, {v(vsr)}, {v(vu)}')
    P(f'v_lshl_add_u32 {v(vj)}, {v(vt)}, 3, {v(vj)}')
    P(f's_and_b32 s{T0}, s{S1}, 7')
    P(f's_lshl_b32 s{T0}, s{T0}, 1')
    P(f'v_xor_b32 {v(vj)}, s{T0}, {v(vj)}')
    P(f'v_bfe_u32 {v(vt)}, v0, 6, 1')
    P(f'v_lshl_add_u32 {v(vs)}, {v(vt)}, 4, {v(vc)}')
    P(f'v_mul_u32_u24 {v(vs)}, {T_BLK}, {v(vs)}')
    P(f'v_lshl_add_u32 {v(vs)}, {v(vj)}, 4, {v(vs)}')
    P(f'v_bfe_u32 {v(vt)}, v0, 7, 1')
    P(f'v_lshl_add_u32 {v(vs)}, {v(vt)}, 13, {v(vs)}')
    P(f's_lshl_b32 s{T0}, s{CS}, 14')
    P(f's_lshl_b32 s{T1}, s{S1}, 8')
    P(f's_add_u32 s{T0}, s{T0}, s{T1}')
    if T_OFF:
        P(f's_add_u32 s{T0}, s{T0}, {T_OFF}')
    P(f's_add_u32 s{T1}, s{T0}, {8 * T_BLK}')
    for q in range(2):
        for i in range(5):
            for k in range(4):
                P(f'v_dot2c_f32_bf16 {v(st[2 * q])}, {v(X[q][i] + k)}, {v(one)}')
                P(f'v_dot2c_f32_bf16 {v(st[2 * q + 1])}, {v(X[q][i] + k)}, {v(X[q][i] + k)}')
    for ctl in ('row_ror:8', 'row_ror:4', 'row_ror:2', 'row_ror:1'):
        for r in st:
            dpp_add(P, r, r, r, ctl)
    ln_finish(P, [(st[0], st[1]), (st[2], st[3])], 640, tmp)
    for q in range(2):
        for k in range(4):
            x = X[q][0] + k
            lo, hi = tmp[2 * (k & 1)], tmp[2 * (k & 1) + 1]
            unpack(P, lo, hi, x)
            P(f'v_fma_f32 {v(lo)}, {v(lo)}, {v(st[2 * q + 1])}, {v(st[2 * q])}')
            P(f'v_fma_f32 {v(hi)}, {v(hi)}, {v(st[2 * q + 1])}, {v(st[2 * q])}')
            P(f'v_cvt_pk_bf16_f32 {v(x)}, {v(lo)}, {v(hi)}')
        for e in range(2):
            P(f'ds_write_b64 {v(vw)}, {v(X[q][0] + 2 * e, 2)} offset:{32 * XR * q + 8 * e}', tw=['xn'])
    stamp(P, 2)
    P.need('xn')
    P('s_barrier')
    stamp(P, 3)
    for ks in range(2):
        for b in range(4):
            for h in range(2):
                P(f'ds_read_b64_tr_b16 {v(X[ks][b + 1] + 2 * h, 2)}, {v(vr)} offset:{(32 * ks + 16 * h) * XR + 8 * b}')
    for ks in range(2):
        for b in range(4):
            mfma(P, v(Dm[b], 4), v(X[ks][b + 1], 4), v(FA[ks], 4), v(Dm[b], 4) if ks else '0')
    for b in range(4):
        P(f'v_cvt_pk_bf16_f32 {v(PK + 2 * b)}, {v(Dm[b])}, {v(Dm[b] + 1)}')
        P(f'v_cvt_pk_bf16_f32 {v(PK + 2 * b + 1)}, {v(Dm[b] + 2)}, {v(Dm[b] + 3)}')
        if b & 1:
            P(f'ds_write_b128 {v(vsw)}, {v(PK + 2 * b - 2, 4)} offset:{8 * (b - 1)}')
    for e in range(2):
        P(f'ds_read_b128 {v(X[0][e], 4)}, {v(vsr)} offset:{8 * SR * e}')
    for e in range(2):
        P(f'buffer_store_dwordx4 {v(X[0][e], 4)}, {v(vs)}, {s(WS, 4)}, s{(T0, T1)[e]} offen{WT}')
    endpgm(P, 4)
    P.label('ka_done')
    P('s_endpgm')

    P.label('ka_other')
    P(f's_cmp_ge_u32 s2, {KA_WO}')
    P('s_cbranch_scc1 ka_wo')
    P(f's_cmp_ge_u32 s2, {KA_GV}')
    P('s_cbranch_scc1 ka_gv')
    if True:
        code_prefetch(P, SRC, 1, 8, 'kb_kernel', f'ctab+{CT_FA}', 512, 1, guard=False)
    P('v_lshlrev_b32 v2, 4, v0')
    for k in range(4):
        P(f'v_mov_b32 v{4 + k}, -1')
    P(f's_lshl_b32 s{T0}, s2, 15')
    P(f's_add_u32 s{T0}, s{T0}, {GRAN_OFF - (KA_PF << 15)}')
    for k in range(4):
        P(f'buffer_store_dwordx4 v[4:7], v2, {s(WS, 4)}, s{T0} offen{WT}')
        if k < 3:
            P(f's_add_u32 s{T0}, s{T0}, 8192')
    P(f's_mul_i32 s{T0}, s2, 12288')
    P(f's_add_u32 s{T0}, s{T0}, {FL1_OFF}')
    P(f'buffer_store_dwordx4 v[4:7], v2, {s(WS, 4)}, s{T0} offen{WT}')
    P(f's_add_u32 s{T0}, s{T0}, 4096')
    P(f'buffer_store_dwordx4 v[4:7], v2, {s(WS, 4)}, s{T0} offen{WT}')
    stamp(P, 1)
    stamp(P, 2)
    stamp(P, 3)
    endpgm(P, 4)

    P.label('ka_gv')
    GI = 16
    P(f'v_readfirstlane_b32 s{T1}, v0')
    P(f's_sub_u32 s{GI}, s2, {KA_GV}')
    srd(P, SRC, KA_WMOD, 640 * 7680)
    srd(P, TB, KA_C, 1280)
    A = Alloc(1, 128)
    vrs, vo, vc = A.get(), A.get(), A.get()
    C4 = A.get(4)
    C1 = A.get()
    W = [A.get(4) for _ in range(10)]
    acc = A.get(8)
    sv = A.get(10)
    ev = A.get(10)
    pk = A.get(5)
    tt = A.get(2)
    P(f'v_lshrrev_b32 {v(vrs)}, 3, v0')
    P(f'v_mul_u32_u24 {v(vc)}, 20, {v(vrs)}')
    P(f'v_mul_u32_u24 {v(vo)}, 76800, {v(vrs)}')
    P(f'v_and_b32 {v(tt)}, 7, v0')
    P(f'v_lshl_add_u32 {v(vo)}, {v(tt)}, 4, {v(vo)}')
    P(f's_lshl_b32 s{T0}, s{GI}, 7')

    P(f'buffer_load_dwordx4 {v(C4, 4)}, {v(vc)}, {s(TB, 4)}, 0 offen')
    P(f'buffer_load_dword {v(C1)}, {v(vc)}, {s(TB, 4)}, 0 offen offset:16')
    for i in range(10):
        P(f'buffer_load_dwordx4 {v(W[i], 4)}, {v(vo)}, {s(SRC, 4)}, s{T0} offen')
        if i < 9:
            P(f's_add_u32 s{T0}, s{T0}, 7680')
    stamp(P, 1)
    for k in range(8):
        P(f'v_mov_b32 {v(acc + k)}, 0')
    P(f's_mov_b32 s{T2}, 0x05040100')
    P(f's_mov_b32 s{T3}, 0x07060302')
    for p in range(5):
        unpack(P, sv + 2 * p, sv + 2 * p + 1, C4 + p if p < 4 else C1)
    for k in range(10):
        P(f'v_mul_f32 {v(ev + k)}, {fl(-LOG2E)}, {v(sv + k)}')
    for k in range(10):
        P(f'v_exp_f32 {v(ev + k)}, {v(ev + k)}')
    for k in range(10):
        P(f'v_add_f32 {v(ev + k)}, 1.0, {v(ev + k)}')
    for k in range(10):
        P(f'v_rcp_f32 {v(ev + k)}, {v(ev + k)}')
    for k in range(10):
        P(f'v_mul_f32 {v(sv + k)}, {v(sv + k)}, {v(ev + k)}')
    for p in range(5):
        P(f'v_cvt_pk_bf16_f32 {v(pk + p)}, {v(sv + 2 * p)}, {v(sv + 2 * p + 1)}')
    for p in range(5):
        for k in range(4):
            P(f'v_perm_b32 {v(ev + 2 * k)}, {v(W[2 * p + 1] + k)}, {v(W[2 * p] + k)}, s{T2}')
            P(f'v_perm_b32 {v(ev + 2 * k + 1)}, {v(W[2 * p + 1] + k)}, {v(W[2 * p] + k)}, s{T3}')
        for k in range(8):
            P(f'v_dot2c_f32_bf16 {v(acc + k)}, {v(ev + k)}, {v(pk + p)}')
    for k in range(4):
        P(f'v_permlane32_swap_b32 {v(acc + k)}, {v(acc + k + 4)}')
    for k in range(4):
        P(f'v_add_f32 {v(acc + k)}, {v(acc + k)}, {v(acc + k + 4)}')
    for k in range(2):
        P(f'v_permlane16_swap_b32 {v(acc + k)}, {v(acc + k + 2)}')
    for k in range(2):
        P(f'v_add_f32 {v(acc + k)}, {v(acc + k)}, {v(acc + k + 2)}')
    dpp_add(P, acc, acc, acc, 'row_ror:8', bank=0x3)
    dpp_add(P, acc, acc + 1, acc + 1, 'row_ror:8', bank=0xc)
    P(f'v_bfe_u32 {v(vo)}, v0, 5, 1')
    P(f'v_lshl_add_u32 {v(vo)}, {v(tt)}, 1, {v(vo)}')
    P(f'v_bfe_u32 {v(vc)}, v0, 4, 1')
    P(f'v_lshl_add_u32 {v(vo)}, {v(vo)}, 1, {v(vc)}')
    P(f'v_bfe_u32 {v(vc)}, v0, 3, 1')
    P(f'v_lshl_add_u32 {v(vo)}, {v(vo)}, 1, {v(vc)}')
    P(f'v_lshrrev_b32 {v(vc)}, 6, v0')
    P(f'v_lshlrev_b32 {v(vc)}, 2, {v(vc)}')
    P(f'v_lshl_add_u32 {v(vo)}, {v(vo)}, 5, {v(vc)}')
    P(f'ds_write_b32 {v(vo)}, {v(acc)}', tw=['part'])
    P(f'v_lshlrev_b32 {v(vo)}, 5, v0')
    stamp(P, 2)
    P.need('part')
    P('s_barrier')
    stamp(P, 3)
    P(f's_cmp_ge_u32 s{T1}, 64')
    P('s_cbranch_scc1 ka_done')
    P(f'ds_read_b128 {v(W[0], 4)}, {v(vo)}')
    P(f'ds_read_b128 {v(W[1], 4)}, {v(vo)} offset:16')
    for k in range(4):
        P(f'v_add_f32 {v(W[0] + k)}, {v(W[0] + k)}, {v(W[1] + k)}')
    P(f'v_add_f32 {v(W[0])}, {v(W[0])}, {v(W[0] + 1)}')
    P(f'v_add_f32 {v(W[0] + 2)}, {v(W[0] + 2)}, {v(W[0] + 3)}')
    P(f'v_add_f32 {v(W[0])}, {v(W[0])}, {v(W[0] + 2)}')
    P(f'v_cvt_pk_bf16_f32 {v(W[0])}, {v(W[0])}, {v(W[0])}')
    P(f'v_and_b32 {v(W[0])}, 0xffff0000, {v(W[0])}')
    P(f's_mov_b32 s{T1}, 0')
    P(f's_sub_u32 s{T0}, s{GI}, 10')
    P(f's_cmp_lt_u32 s{T0}, 10')
    P(f's_cselect_b32 s{T1}, 1.0, s{T1}')
    P(f's_sub_u32 s{T0}, s{GI}, 40')
    P(f's_cmp_lt_u32 s{T0}, 10')
    P(f's_cselect_b32 s{T1}, 1.0, s{T1}')
    P(f'v_add_f32 {v(W[0])}, s{T1}, {v(W[0])}')
    P(f'v_cvt_pk_bf16_f32 {v(W[0])}, {v(W[0])}, {v(W[0])}')
    P(f'v_and_b32 {v(W[0])}, 0xffff0000, {v(W[0])}')
    P(f'v_lshlrev_b32 {v(vo)}, 2, v0')
    P(f's_lshl_b32 s{T0}, s{GI}, 8')
    P(f's_add_u32 s{T0}, s{T0}, {MOD_OFF}')
    P(f'buffer_store_dword {v(W[0])}, {v(vo)}, {s(WS, 4)}, s{T0} offen{WT}')
    endpgm(P, 4)

    P.label('ka_wo')
    P(f's_cmp_ge_u32 s2, {KA_END}')
    P('s_cbranch_scc1 ka_done')
    srd(P, SRC, KA_WOUT, 864 * 1280)
    assert all((f * 1171) >> 17 == f // 112 for f in range(896))
    A = Alloc(1, 128)
    vrl, vu, vo, vw, vr, vt, vq, vj2 = [A.get() for _ in range(8)]
    Fr = [A.get(4) for _ in range(5)]
    W = [A.get(4) for _ in range(5)]
    KS = 16
    P(f's_sub_u32 s{KS}, s2, {KA_WO}')
    P(f's_lshl_b32 s{T0}, s{KS}, 5')
    P(f'v_lshrrev_b32 {v(vrl)}, 4, v0')
    P(f'v_add_u32 {v(vo)}, s{T0}, {v(vrl)}')
    P(f'v_mul_u32_u24 {v(vt)}, 1171, {v(vo)}')
    P(f'v_lshrrev_b32 {v(vt)}, 17, {v(vt)}')
    P(f'v_mul_u32_u24 {v(vu)}, 112, {v(vt)}')
    P(f'v_sub_u32 {v(vu)}, {v(vo)}, {v(vu)}')
    P(f'v_lshrrev_b32 {v(vq)}, 1, {v(vt)}')
    P(f'v_lshlrev_b32 {v(vq)}, 3, {v(vq)}')
    P(f'v_sub_u32 {v(vo)}, {v(vo)}, {v(vu)}')
    P(f'v_sub_u32 {v(vo)}, {v(vo)}, {v(vq)}')
    P(f'v_and_b32 {v(vj2)}, 1, {v(vt)}')
    P(f'v_bfe_u32 {v(vt)}, {v(vu)}, 3, 2')
    P(f'v_and_b32 {v(vr)}, 3, {v(vu)}')
    P(f'v_lshl_add_u32 {v(vr)}, {v(vt)}, 2, {v(vr)}')
    P(f'v_bfe_u32 {v(vt)}, {v(vu)}, 2, 1')
    P(f'v_lshrrev_b32 {v(vq)}, 5, {v(vu)}')
    P(f'v_lshl_add_u32 {v(vw)}, {v(vt)}, 4, {v(vr)}')
    P(f'v_cmp_le_u32 vcc, 64, {v(vu)}')
    P(f'v_add_u32 {v(vr)}, 32, {v(vr)}')
    P(f'v_cndmask_b32 {v(vq)}, {v(vq)}, {v(vt)}, vcc')
    P(f'v_cndmask_b32 {v(vw)}, {v(vw)}, {v(vr)}, vcc')
    P(f'v_cmp_le_u32 vcc, 96, {v(vu)}')
    P(f'v_bfe_u32 {v(vt)}, {v(vu)}, 3, 1')
    P(f'v_and_b32 {v(vr)}, 7, {v(vu)}')
    P(f'v_add_u32 {v(vr)}, 48, {v(vr)}')
    P(f'v_cndmask_b32 {v(vq)}, {v(vq)}, {v(vt)}, vcc')
    P(f'v_cndmask_b32 {v(vw)}, {v(vw)}, {v(vr)}, vcc')
    P(f'v_mul_u32_u24 {v(vt)}, 112, {v(vj2)}')
    P(f'v_add_u32 {v(vt)}, {v(vt)}, {v(vu)}')
    P(f'v_cmp_gt_u32 vcc, 216, {v(vt)}')
    P(f'v_mad_u32_u24 {v(vo)}, {v(vq)}, 56, {v(vo)}')
    P(f'v_add_u32 {v(vo)}, {v(vo)}, {v(vw)}')
    P(f'v_mul_u32_u24 {v(vo)}, 1280, {v(vo)}')
    P(f'v_and_b32 {v(vu)}, 15, v0')
    P(f'v_lshl_add_u32 {v(vo)}, {v(vu)}, 4, {v(vo)}')
    P(f'v_mov_b32 {v(vt)}, {OOB:#x}')
    P(f'v_cndmask_b32 {v(vo)}, {v(vt)}, {v(vo)}, vcc')
    for i in range(5):
        P(f'buffer_load_dwordx4 {v(W[i], 4)}, {v(vo)}, {s(SRC, 4)}, 0 offen offset:{256 * i}')
    stamp(P, 1)
    P(f'v_mul_u32_u24 {v(vw)}, 1296, {v(vrl)}')
    P(f'v_lshl_add_u32 {v(vw)}, {v(vu)}, 4, {v(vw)}')
    P(f'v_readfirstlane_b32 s{T1}, v0')
    P(f's_lshr_b32 s{T1}, s{T1}, 6')
    P(f'v_bfe_u32 {v(vr)}, v0, 4, 2')
    P(f'v_bfe_u32 {v(vt)}, v0, 2, 2')
    P(f'v_lshl_add_u32 {v(vr)}, {v(vr)}, 3, {v(vt)}')
    P(f'v_mul_u32_u24 {v(vr)}, 1296, {v(vr)}')
    P(f'v_and_b32 {v(vt)}, 3, v0')
    P(f'v_lshlrev_b32 {v(vt)}, 3, {v(vt)}')
    P(f's_mul_i32 s{T2}, s{T1}, 160')
    P(f'v_add3_u32 {v(vr)}, {v(vr)}, {v(vt)}, s{T2}')
    P(f'v_and_b32 {v(vo)}, 63, v0')
    P(f'v_lshlrev_b32 {v(vo)}, 4, {v(vo)}')
    P(f's_mul_i32 s{T0}, s{T1}, 28')
    P(f's_add_u32 s{T0}, s{T0}, s{KS}')
    P(f's_mul_i32 s{T0}, s{T0}, 5120')
    P(f's_add_u32 s{T0}, s{T0}, {WOUT_OFF}')
    P(f's_add_u32 s{T2}, s{T0}, 4096')
    for i in range(5):
        P(f'ds_write_b128 {v(vw)}, {v(W[i], 4)} offset:{256 * i}', tw=['img2'])
    stamp(P, 2)
    P.need('img2')
    P('s_barrier')
    stamp(P, 3)
    for nb in range(5):
        for h in range(2):
            P(f'ds_read_b64_tr_b16 {v(Fr[nb] + 2 * h, 2)}, {v(vr)} offset:{4 * h * 1296 + 32 * nb}')
    for nb in range(5):
        if nb < 4:
            P(f'buffer_store_dwordx4 {v(Fr[nb], 4)}, {v(vo)}, {s(WS, 4)}, s{T0} offen offset:{1024 * nb}{WT}')
        else:
            P(f'buffer_store_dwordx4 {v(Fr[nb], 4)}, {v(vo)}, {s(WS, 4)}, s{T2} offen{WT}')
    endpgm(P, 4)
    return P


def weave(P, main, side, per):
    for m in main:
        m()
        for _ in range(per):
            if side:
                side.pop(0)()


class Rec:
    def __init__(self, P):
        self.P = P
        self.q = []

    def __call__(self, text, tw=(), tr=()):
        self.q.append(lambda: self.P(text, tw, tr))

    def need(self, *t):
        self.q.append(lambda: self.P.need(*t))


def l2_prefetch(P, R, vaddr, soff, vdst, n, step):
    for e in range(n):
        P(f'buffer_load_dwordx4 {v(vdst + 4 * e, 4)}, {v(vaddr)}, {s(R, 4)}, s{soff} offen')
        if e < n - 1:
            P(f's_add_u32 s{soff}, s{soff}, {step}')


KB_MOD, KB_CT, KB_G = 81920, 98304, 114688
GS = 1288
KB_W = KB_G + 16 * GS
KB_LDS = KB_W + 2 * 7168


def gen_kb():
    P = Prog('kb_kernel')
    WS, XS, TB, WI, PF = 4, 8, 12, 16, 20
    T2, JJ, W, TBK, T0, T1, TT, AM0, AM1, SH1, TD, AM2, AM3, UJ, UK = range(24, 39)
    P('s_cmp_ge_u32 s2, 256')
    P('s_cbranch_scc1 kb_done')
    stamp(P, 0)
    srd(P, WS, KA_WS, WS_END)
    srd(P, XS, KA_X, S * 1280)
    srd(P, WI, KA_WIN, 640 * 3456)
    pcsrd(P, TB, 'ctab', 16384)
    A = Alloc(1, 256)
    vl, vl16, vt, vu = [A.get() for _ in range(4)]
    P(f'v_readfirstlane_b32 s{W}, v0')
    P(f'v_and_b32 {v(vl)}, 63, v0')
    P(f'v_lshlrev_b32 {v(vl16)}, 4, {v(vl)}')
    P(f's_lshr_b32 s{W}, s{W}, 6')
    P(f's_lshl_b32 s{T1}, s{W}, 11')
    P(f's_add_u32 m0, s{T1}, {KB_CT}')
    P(f's_and_b32 s{T2}, s2, 7')
    for e in range(2):
        P(f'buffer_load_dwordx4 {v(vl16)}, {s(TB, 4)}, s{T1} offen offset:{1024 * e} lds', tw=['CT'])
    P(f's_bfe_u32 s{T0}, s2, 0x30003')
    P(f's_lshl3_add_u32 s{T2}, s{T2}, s{T0}')
    P(f's_lshr_b32 s{JJ}, s2, 6')
    P(f's_sub_u32 s{T0}, 64, s{T2}')
    P(f's_min_u32 s{TBK}, s{T0}, s{T2}')
    P(f's_and_b32 s{TBK}, s{TBK}, 31')
    P(f's_mul_i32 s{TBK}, s{TBK}, {T_BLK}')
    if T_OFF:
        P(f's_add_u32 s{TBK}, s{TBK}, {T_OFF}')
    P(f's_add_u32 m0, s{T1}, {KB_MOD}')
    P(f's_add_u32 s{T0}, s{T1}, {MOD_OFF}')
    for e in range(2):
        P(f'buffer_load_dwordx4 {v(vl16)}, {s(WS, 4)}, s{T0} offen offset:{1024 * e} lds', tw=['CT'])
    P(f's_mul_i32 s{TD}, s{W}, 10240')
    P(f's_mov_b32 m0, s{TD}')
    P(f's_add_u32 s{TD}, s{TD}, s{TBK}')
    L = Rec(P)
    for i in range(10):
        def one(i=i):
            if i and i % 4 == 0:
                P('s_add_u32 m0, m0, 4096')
                P(f's_add_u32 s{TD}, s{TD}, 4096')
            P(f'buffer_load_dwordx4 {v(vl16)}, {s(WS, 4)}, s{TD} offen offset:{1024 * (i % 4)} lds', tw=['T'])
        L.q.append(one)
    Q = Rec(P)
    XR = [A.get(4) for _ in range(2)]
    vx = A.get()
    Q(f's_lshl3_add_u32 s{TT}, s{JJ}, s{W}')
    Q(f's_lshl_b32 s{TT}, s{TT}, 6')
    Q(f's_add_u32 s{TT}, s{TT}, s{T2}')
    Q(f'v_mov_b32 {v(vt)}, {OOB:#x}')
    Q(f'v_cmp_gt_u32 vcc, 40, {v(vl)}')
    Q(f'v_cndmask_b32 {v(vx)}, {v(vt)}, {v(vl16)}, vcc')
    CF = [A.get(4) for _ in range(2)]
    va, vb0, vb1, vg = [A.get() for _ in range(4)]
    cv = A.get(8)
    Q(f's_cmp_eq_u32 s{T2}, 32\ns_cselect_b32 s{AM0}, 0, -1\ns_cselect_b32 s{SH1}, 0, {fl(-0.25)}')
    Q(f's_cmp_gt_u32 s{T2}, 32\ns_cselect_b32 s{SH1}, {fl(0.25)}, s{SH1}')
    Q(f's_cmp_eq_u32 s{T2}, 0\ns_cselect_b32 s{AM1}, 0, -1')
    Q(f's_lshl_b32 s{T0}, s{JJ}, 9')
    Q(f's_add_u32 s{T0}, s{T0}, s{T2}')
    Q(f'v_bfe_u32 {v(va)}, v0, 1, 3')
    Q(f'v_lshl_add_u32 {v(va)}, {v(va)}, 6, s{T0}')
    Q(f'v_cvt_f32_u32 {v(va)}, {v(va)}')
    Q(f'v_mul_f32 {v(va)}, {fl(1.0 / 2048)}, {v(va)}')
    Q(f'v_bfe_u32 {v(vg)}, v0, 4, 2')
    Q(f'v_cvt_f32_u32 {v(vb0)}, {v(vg)}')
    Q(f'v_mul_f32 {v(vb0)}, 4.0, {v(vb0)}')
    Q(f'v_and_b32 {v(vt)}, 1, v0')
    Q(f'v_cvt_f32_u32 {v(vt)}, {v(vt)}')
    Q(f'v_mul_f32 {v(vt)}, {fl(0.25)}, {v(vt)}')
    Q(f'v_fma_f32 {v(vb0)}, {v(vb0)}, {v(va)}, {v(vt)}')
    Q(f'v_add_f32 {v(vb1)}, s{SH1}, {v(vb0)}')
    for ks in range(2):
        vb = (vb0, vb1)[ks]
        for q in range(8):
            kk = 16 * (q >> 2) + (q & 3)
            if kk:
                Q(f'v_fmamk_f32 {v(cv + q)}, {v(va)}, {fl(kk)}, {v(vb)}')
        for q in range(8):
            Q(f'v_cos_f32 {v(cv + q)}, {v(cv + q if q else vb)}')
        for k in range(4):
            Q(f'v_cvt_pk_bf16_f32 {v(CF[ks] + k)}, {v(cv + 2 * k)}, {v(cv + 2 * k + 1)}')
        for k in range(4):
            Q(f'v_and_b32 {v(CF[ks] + k)}, s{(AM0, AM1)[ks]}, {v(CF[ks] + k)}')
    vr1 = [A.get() for _ in range(5)]
    vm1, vgw, vra0, vra1, vzw, vzr, vyw, vyr, vh, vmr, vct = [A.get() for _ in range(11)]
    Q(f's_mul_i32 s{T0}, s{W}, 160')
    Q(f'v_lshrrev_b32 {v(vt)}, 2, {v(vl)}')
    Q(f'v_and_b32 {v(vu)}, 3, v0')
    Q(f'v_lshlrev_b32 {v(vu)}, 3, {v(vu)}')
    Q(f'v_lshl_add_u32 {v(vm1)}, {v(vt)}, 8, {v(vu)}')
    Q(f'v_and_b32 {v(vgw)}, 7, {v(vt)}')
    Q(f'v_lshlrev_b32 {v(vgw)}, 5, {v(vgw)}')
    Q(f's_mul_i32 s{T1}, s{W}, 5')
    for mb in range(5):
        Q(f's_add_u32 s{AM2}, s{T1}, {mb}\ns_lshr_b32 s{AM3}, s{AM2}, 3\ns_and_b32 s{AM2}, s{AM2}, 7\n'
          f's_lshl_b32 s{AM2}, s{AM2}, 5\ns_lshl_b32 s{AM3}, s{AM3}, 14')
        Q(f'v_xor_b32 {v(vr1[mb])}, s{AM2}, {v(vgw)}')
        Q(f'v_add3_u32 {v(vr1[mb])}, {v(vr1[mb])}, {v(vm1)}, s{AM3}')
    Q(f's_lshl_b32 s{T1}, s{T0}, 1')
    Q(f's_add_u32 s{T1}, s{T1}, {KB_MOD}')
    Q(f'v_lshl_add_u32 {v(vm1)}, {v(vg)}, 4, s{T1}')
    Q(f'v_and_b32 {v(vh)}, 15, v0')
    Q(f'v_mul_u32_u24 {v(vgw)}, {GS}, {v(vh)}')
    Q(f'v_lshl_add_u32 {v(vgw)}, {v(vg)}, 3, {v(vgw)}')
    Q(f's_add_u32 s{T0}, s{T0}, {KB_G}')
    Q(f'v_add_u32 {v(vgw)}, s{T0}, {v(vgw)}')
    Q(f's_mul_i32 s{T0}, s{W}, {2 * GS}')
    Q(f's_add_u32 s{T0}, s{T0}, {KB_G}')
    Q(f'v_lshl_add_u32 {v(vra0)}, {v(vt)}, 6, {v(vu)}')
    Q(f'v_add_u32 {v(vra0)}, s{T0}, {v(vra0)}')
    Q(f'v_and_b32 {v(vt)}, 3, {v(vt)}')
    Q(f'v_lshl_add_u32 {v(vra1)}, {v(vt)}, 6, {v(vu)}')
    Q(f's_add_u32 s{T0}, s{T0}, 1024')
    Q(f'v_add_u32 {v(vra1)}, s{T0}, {v(vra1)}')
    Q(f's_lshl_b32 s{T0}, s{W}, 13')
    Q(f'v_mul_u32_u24 {v(vzw)}, 288, {v(vg)}')
    Q(f'v_lshl_add_u32 {v(vzw)}, {v(vh)}, 2, {v(vzw)}')
    Q(f'v_add_u32 {v(vzw)}, s{T0}, {v(vzw)}')
    Q(f'v_mul_u32_u24 {v(vzr)}, 144, {v(vh)}')
    Q(f'v_lshl_add_u32 {v(vzr)}, {v(vg)}, 4, {v(vzr)}')
    Q(f'v_add_u32 {v(vzr)}, s{T0}, {v(vzr)}')
    Q(f's_add_u32 s{T0}, s{T0}, 4608')
    Q(f'v_mul_u32_u24 {v(vyw)}, 80, {v(vh)}')
    Q(f'v_lshl_add_u32 {v(vyw)}, {v(vg)}, 4, {v(vyw)}')
    Q(f'v_add_u32 {v(vyw)}, s{T0}, {v(vyw)}')
    Q(f'v_min_u32 {v(vt)}, 39, {v(vl)}')
    Q(f'v_lshlrev_b32 {v(vt)}, 5, {v(vt)}')
    Q(f'v_add_u32 {v(vyr)}, s{T0}, {v(vt)}')
    Q(f'v_add_u32 {v(vmr)}, {KB_MOD}, {v(vt)}')
    Q(f'v_add_u32 {v(vct)}, {KB_CT}, {v(vl16)}')
    weave(P, L.q, Q.q, 12)
    for o in Q.q:
        o()
    P(f's_mul_i32 s{T0}, s{TT}, 1280')
    for e in range(2):
        P(f'buffer_load_dwordx4 {v(XR[e], 4)}, {v(vx)}, {s(XS, 4)}, s{T0} offen offset:{640 * e}')
    vwr, vws = A.get(), A.get()
    WF = [A.get(4) for _ in range(2)]
    assert all((x * 4682) >> 16 == x // 14 for x in range(512))
    P(f'v_mul_u32_u24 {v(vt)}, 4682, v0')
    P(f'v_lshrrev_b32 {v(vt)}, 16, {v(vt)}')
    P(f'v_mul_u32_u24 {v(vu)}, 14, {v(vt)}')
    P(f'v_sub_u32 {v(vu)}, v0, {v(vu)}')
    P(f'v_mul_u32_u24 {v(vws)}, 3456, {v(vt)}')
    P(f'v_lshl_add_u32 {v(vws)}, {v(vu)}, 4, {v(vws)}')
    P(f'v_cmp_gt_u32 vcc, 7, {v(vu)}')
    P(f'v_add_u32 {v(vt)}, 1728, {v(vws)}')
    P(f'v_subrev_u32 {v(vws)}, 112, {v(vws)}')
    P(f'v_cndmask_b32 {v(vws)}, {v(vws)}, {v(vt)}, vcc')
    P(f's_and_b32 s{UJ}, s2, 15')
    P(f's_lshr_b32 s{UK}, s2, 4')
    P(f's_mul_i32 s{T0}, s{UJ}, 112')
    P(f's_lshr_b32 s{T1}, s{UJ}, 2')
    P(f's_lshl_b32 s{T1}, s{T1}, 4')
    P(f's_sub_u32 s{T0}, s{T0}, s{T1}')
    P(f's_mul_i32 s{T1}, s{UK}, {32 * 3456}')
    P(f's_add_u32 s{T0}, s{T0}, s{T1}')
    P(f's_add_u32 s{T1}, s{T0}, {512 * 3456}')
    P(f's_lshl_b32 s{AM2}, s{W}, 10')
    P(f's_cmp_eq_u32 s{W}, 7')
    P('s_cbranch_scc1 kb_now')
    P(f's_add_u32 m0, s{AM2}, {KB_W}')
    P(f'buffer_load_dwordx4 {v(vws)}, {s(WI, 4)}, s{T0} offen lds', tw=['WL'])
    P(f's_add_u32 m0, s{AM2}, {KB_W + 7168}')
    P(f'buffer_load_dwordx4 {v(vws)}, {s(WI, 4)}, s{T1} offen lds', tw=['WL'])
    P.label('kb_now')
    P(f'v_bfe_u32 {v(vt)}, v0, 2, 2')
    P(f'v_lshl_add_u32 {v(vt)}, {v(vg)}, 3, {v(vt)}')
    P(f'v_mul_u32_u24 {v(vwr)}, 224, {v(vt)}')
    P(f'v_and_b32 {v(vt)}, 3, v0')
    P(f'v_bfe_u32 {v(vu)}, v0, 1, 1')
    P(f's_and_b32 s{T0}, s{UJ}, 1')
    P(f'v_xor_b32 {v(vu)}, s{T0}, {v(vu)}')
    P(f'v_mul_u32_u24 {v(vu)}, 112, {v(vu)}')
    P(f'v_and_b32 {v(vws)}, 1, v0')
    P(f'v_lshl_add_u32 {v(vu)}, {v(vws)}, 3, {v(vu)}')
    P(f'v_lshlrev_b32 {v(vt)}, 3, {v(vt)}')
    P(f's_cmp_eq_u32 s{W}, 3')
    P('s_cselect_b64 vcc, -1, 0')
    P(f'v_cndmask_b32 {v(vt)}, {v(vt)}, {v(vu)}, vcc')
    P(f's_lshl_b32 s{T0}, s{W}, 5')
    P(f's_cmp_gt_u32 s{W}, 3')
    P(f's_cselect_b32 s{T1}, 16, 0')
    P(f's_sub_u32 s{T0}, s{T0}, s{T1}')
    P(f's_add_u32 s{T0}, s{T0}, {KB_W}')
    P(f'v_add3_u32 {v(vwr)}, {v(vwr)}, {v(vt)}, s{T0}')
    P(f's_and_b32 s{T0}, s{UJ}, 3')
    P(f's_lshl3_add_u32 s{T0}, s{T0}, s{W}')
    P(f's_cmp_eq_u32 s{T0}, 27')
    P(f's_cselect_b32 s{AM3}, 0, -1')
    P(f's_mul_i32 s{UJ}, s{UJ}, 143360')
    P(f's_movk_i32 s{T0}, 3072')
    P(f's_cmp_lt_u32 s{W}, 4')
    P(f's_cselect_b32 s{T0}, 4096, s{T0}')
    P(f's_cselect_b32 s{T1}, {61440 + 4096}, 0')
    P(f's_mul_i32 s{UK}, s{UK}, s{T0}')
    P(f's_add_u32 s{UJ}, s{UJ}, s{UK}')
    P(f's_add_u32 s{UJ}, s{UJ}, s{AM2}')
    P(f's_add_u32 s{UJ}, s{UJ}, s{T1}')
    P(f's_add_u32 s{UJ}, s{UJ}, {WIN_OFF - 4096}')
    P(f's_lshl4_add_u32 s{UK}, s{T0}, s{UJ}')
    P('s_cmp_lt_u32 s2, 64')
    P(f's_cselect_b32 s{UK}, s{UK}, {OOB >> 1:#x}')
    P(f's_cmp_eq_u32 s{W}, 7')
    P(f's_cselect_b32 s{UJ}, {OOB >> 1:#x}, s{UJ}')
    P(f's_cselect_b32 s{UK}, s{UJ}, s{UK}')
    stamp(P, 1)
    TFB = A.get(40)
    TF = [[TFB + 4 * (2 * mb + ks) for ks in range(2)] for mb in range(5)]
    MCB = A.get(40)
    MC = [MCB + 4 * mb for mb in range(5)]
    D1 = [MCB + 20 + 4 * mb for mb in range(5)]
    CA = [[A.get(4) for cp in range(2)] for mb in range(3)]
    TW = [[A.get(4) for nb in range(2)] for mb in range(3)]
    CB = [[A.get(4) for ks in range(2)] for nb in range(2)]
    GA = A.get(16)
    PFC = A.get(1)
    P.need('CT')
    P('s_barrier')
    for mb in range(5):
        P(f'ds_read_b128 {v(MC[mb], 4)}, {v(vm1)} offset:{2560 + 64 * mb}')
    for k in range(6):
        P(f'ds_read_b128 {v(CA[k >> 1][k & 1], 4)}, {v(vct)} offset:{CT_CA + 1024 * k}')
    for k in range(6):
        P(f'ds_read_b128 {v(TW[k >> 1][k & 1], 4)}, {v(vct)} offset:{CT_TW + 1024 * k}')
    for k in range(4):
        P(f'ds_read_b128 {v(CB[k >> 1][k & 1], 4)}, {v(vct)} offset:{CT_CB + 1024 * k}')
    for e in range(2):
        for k in range(2):
            P(f'ds_read_b128 {v(GA + 8 * e + 4 * k, 4)}, {v(vmr)} offset:{2 * 2560 + 1280 * e + 16 * k}')
    stamp(P, 2)
    P.need('T')
    P('s_barrier')
    stamp(P, 3)
    for mb in range(5):
        for ks in range(2):
            for h in range(2):
                P(f'ds_read_b64_tr_b16 {v(TF[mb][ks] + 2 * h, 2)}, {v(vr1[mb])} offset:{(32 * ks + 16 * h) * 256}')
    code_prefetch(P, PF, vt, PFC, 'kg_kernel', 'kb_kernel', 512, 1, back=True)
    for mb in range(5):
        for ks in range(2):
            mfma(P, v(D1[mb], 4), v(TF[mb][ks], 4), v(CF[ks], 4), v(D1[mb], 4) if ks else '0')
    for mb in range(5):
        for h in range(2):
            P(f'v_pk_mul_f32 {v(D1[mb] + 2 * h, 2)}, {v(D1[mb] + 2 * h, 2)}, {v(MC[mb] + 2 * h, 2)}')
    P('s_cmp_lg_u32 s2, 0')
    P('s_cbranch_scc1 kb_nodc')
    for mb in range(5):
        P(f'ds_read_b128 {v(MC[mb], 4)}, {v(vm1)} offset:{64 * mb}')
    P(f'v_cmp_eq_u32 vcc, 0, {v(vh)}')
    P(f'v_mov_b32 {v(vt)}, {fl(2048.0)}')
    P(f'v_cndmask_b32 {v(vt)}, 0, {v(vt)}, vcc')
    for mb in range(5):
        for i in range(4):
            P(f'v_fmac_f32 {v(D1[mb] + i)}, {v(MC[mb] + i)}, {v(vt)}')
    P.label('kb_nodc')
    for mb in range(5):
        P(f'v_cvt_pk_bf16_f32 {v(D1[mb])}, {v(D1[mb])}, {v(D1[mb] + 1)}')
        P(f'v_cvt_pk_bf16_f32 {v(D1[mb] + 1)}, {v(D1[mb] + 2)}, {v(D1[mb] + 3)}')
        P(f'ds_write_b64 {v(vgw)}, {v(D1[mb], 2)} offset:{32 * mb}', tw=['G'])
    stamp(P, 4)
    P.need('G', 'WL')
    P('s_barrier')
    stamp(P, 5)
    GF = [[TFB + 4 * (2 * nb + cp) for cp in range(2)] for nb in range(2)]
    DA = [[TFB + 16 + 4 * (2 * mb + nb) for nb in range(2)] for mb in range(3)]
    CBR, SBR = MCB, MCB + 16
    for cp in range(2):
        for nb in range(2):
            P(f'ds_read_b64_tr_b16 {v(GF[nb][cp], 2)}, {v(vra0)} offset:{cp * GS + 32 * nb}')
            P(f'ds_read_b64_tr_b16 {v(GF[nb][cp] + 2, 2)}, {v(vra1)} offset:{cp * GS + 32 * nb}')
    for e in range(2):
        for h in range(2):
            P(f'ds_read_b64_tr_b16 {v(WF[e] + 2 * h, 2)}, {v(vwr)} offset:{7168 * e + 4 * 224 * h}')
    for mb in range(3):
        for cp in range(2):
            for nb in range(2):
                mfma(P, v(DA[mb][nb], 4), v(CA[mb][cp], 4), v(GF[nb][cp], 4), v(DA[mb][nb], 4) if cp else '0')
    for e in range(2):
        for k in range(2):
            P(f'ds_read_b128 {v(CBR + 8 * e + 4 * k, 4)}, {v(vmr)} offset:{4 * 2560 + 1280 * e + 16 * k}')
            P(f'ds_read_b128 {v(SBR + 8 * e + 4 * k, 4)}, {v(vmr)} offset:{3 * 2560 + 1280 * e + 16 * k}')
    for mb in range(3):
        for nb in range(2):
            d, t = DA[mb][nb], TW[mb][nb]
            c0 = cv + 4 * nb
            for p in range(2):
                P(f'v_pk_mul_f32 {v(c0 + 2 * p, 2)}, {v(d + 2 * p, 2)}, {v(t + 2 * p, 2)} op_sel_hi:[1,0]')
        for nb in range(2):
            d, t = DA[mb][nb], TW[mb][nb]
            c0 = cv + 4 * nb
            for p in range(2):
                P(f'v_pk_fma_f32 {v(c0 + 2 * p, 2)}, {v(d + 2 * p, 2)}, {v(t + 2 * p, 2)}, {v(c0 + 2 * p, 2)} '
                  f'op_sel:[1,1,0] op_sel_hi:[0,1,1] neg_hi:[1,0,0]')
        for nb in range(2):
            d = DA[mb][nb]
            c0 = cv + 4 * nb
            for p in range(2):
                P(f'v_cvt_pk_bf16_f32 {v(d + p)}, {v(c0 + 2 * p)}, {v(c0 + 2 * p + 1)}')
        for nb in range(2):
            for p in range(2):
                P(f'ds_write_b32 {v(vzw)}, {v(DA[mb][nb] + p)} offset:{(8 * mb + p) * 144 + 64 * nb}')
    for e in range(2):
        for k in range(4):
            P(f'v_and_b32 {v(WF[e] + k)}, s{AM3}, {v(WF[e] + k)}')
        P(f'buffer_store_dwordx4 {v(WF[e], 4)}, {v(vl16)}, {s(WS, 4)}, s{(UJ, UK)[e]} offen{WT}')
    stamp(P, 6)
    ZF = [[GF[mb][ks] for ks in range(2)] for mb in range(2)]
    DB = [[CA[mb][nb] for nb in range(2)] for mb in range(2)]
    Y = DA[0][0]
    for ks in range(2):
        for mb in range(2):
            P(f'ds_read_b128 {v(ZF[mb][ks], 4)}, {v(vzr)} offset:{16 * 144 * mb + 64 * ks}')
    XU = TW[0][0]
    assert TW[1][1] == XU + 12
    for e in range(2):
        for k in range(4):
            unpack(P, XU + 8 * e + 2 * k, XU + 8 * e + 2 * k + 1, XR[e] + k)
    for ks in range(2):
        for mb in range(2):
            for nb in range(2):
                mfma(P, v(DB[mb][nb], 4), v(ZF[mb][ks], 4), v(CB[nb][ks], 4), v(DB[mb][nb], 4) if ks else '0')
    for nb in range(2):
        P(f'ds_write_b128 {v(vyw)}, {v(DB[0][nb], 4)} offset:{1280 * nb}')
    P('s_mov_b64 exec, 0xffff')
    for nb in range(2):
        P(f'ds_write_b128 {v(vyw)}, {v(DB[1][nb], 4)} offset:{1280 * nb + 64}')
    P('s_mov_b64 exec, -1')
    for e in range(2):
        for k in range(2):
            P(f'ds_read_b128 {v(Y + 8 * e + 4 * k, 4)}, {v(vyr)} offset:{1280 * e + 16 * k}')
    stamp(P, 7)
    sm, sq = cv + 4, cv + 6
    for k in range(8):
        P(f'v_pk_fma_f32 {v(Y + 2 * k, 2)}, {v(Y + 2 * k, 2)}, {v(GA + 2 * k, 2)}, {v(XU + 2 * k, 2)}')
    P(f'v_pk_add_f32 {v(sm, 2)}, {v(Y, 2)}, {v(Y + 2, 2)}')
    P(f'v_pk_mul_f32 {v(sq, 2)}, {v(Y, 2)}, {v(Y, 2)}')
    P(f'v_pk_fma_f32 {v(sq, 2)}, {v(Y + 2, 2)}, {v(Y + 2, 2)}, {v(sq, 2)}')
    for k in range(2, 8):
        P(f'v_pk_add_f32 {v(sm, 2)}, {v(sm, 2)}, {v(Y + 2 * k, 2)}')
        P(f'v_pk_fma_f32 {v(sq, 2)}, {v(Y + 2 * k, 2)}, {v(Y + 2 * k, 2)}, {v(sq, 2)}')
    P(f'v_cmp_gt_u32 vcc, 40, {v(vl)}')
    P(f'v_add_f32 {v(sm)}, {v(sm)}, {v(sm + 1)}')
    P(f'v_add_f32 {v(sq)}, {v(sq)}, {v(sq + 1)}')
    P(f'v_cndmask_b32 {v(sm)}, 0, {v(sm)}, vcc')
    P(f'v_cndmask_b32 {v(sq)}, 0, {v(sq)}, vcc')
    side = Rec(P)
    for e in range(2):
        for k in range(4):
            y = Y + 8 * e + 2 * k
            side(f'v_cvt_pk_bf16_f32 {v(XR[e] + k)}, {v(y)}, {v(y + 1)}')
    red = Rec(P)
    for ctl in ('row_ror:8', 'row_ror:4', 'row_ror:2', 'row_ror:1'):
        red.q.append(lambda ctl=ctl: (dpp_add(P, sm, sm, sm, ctl), dpp_add(P, sq, sq, sq, ctl)))
    for ctl, row in (('row_bcast:15', 0xa), ('row_bcast:31', 0xc)):
        red.q.append(lambda ctl=ctl, row=row: (dpp_add(P, sm, sm, sm, ctl, row=row), dpp_add(P, sq, sq, sq, ctl, row=row)))
    side.q.pop(0)()
    side.q.pop(0)()
    weave(P, red.q, side.q, 1)
    P(f'v_readlane_b32 s{T0}, {v(sm)}, 63')
    P(f'v_readlane_b32 s{T1}, {v(sq)}, 63')
    P(f's_mul_i32 s{TD}, s{TT}, 1280')
    P(f's_add_u32 s{TD}, s{TD}, {X1_OFF}')
    P(f'v_mov_b32 {v(sm)}, s{T0}')
    P(f'v_mov_b32 {v(sq)}, s{T1}')
    for e in range(2):
        P(f'buffer_store_dwordx4 {v(XR[e], 4)}, {v(vx)}, {s(WS, 4)}, s{TD} offen offset:{640 * e}{WT}')
    ln_finish(P, [(sm, sq)], 640, [cv])
    for k in range(8):
        P(f'v_pk_fma_f32 {v(Y + 2 * k, 2)}, {v(Y + 2 * k, 2)}, {v(sq, 2)}, {v(sm, 2)} op_sel_hi:[1,0,0]')
    for k in range(8):
        P(f'v_pk_fma_f32 {v(Y + 2 * k, 2)}, {v(Y + 2 * k, 2)}, {v(CBR + 2 * k, 2)}, {v(SBR + 2 * k, 2)}')
    for k in range(8):
        P(f'v_cvt_pk_bf16_f32 {v(GA + k)}, {v(Y + 2 * k)}, {v(Y + 2 * k + 1)}')
    P(f's_lshr_b32 s{T0}, s{TT}, 4')
    P(f's_mul_i32 s{T0}, s{T0}, 20480')
    P(f's_and_b32 s{T1}, s{TT}, 15')
    P(f's_lshl4_add_u32 s{T0}, s{T1}, s{T0}')
    P(f's_add_u32 s{T0}, s{T0}, {H2_OFF}')
    P(f's_add_u32 s{T1}, s{T0}, {40 * 256}')
    P(f'v_lshlrev_b32 {v(vt)}, 8, {v(vl)}')
    P(f'v_mov_b32 {v(vu)}, {OOB:#x}')
    P(f'v_cndmask_b32 {v(vt)}, {v(vu)}, {v(vt)}, vcc')
    P(f'buffer_store_dwordx4 {v(GA, 4)}, {v(vt)}, {s(WS, 4)}, s{T0} offen')
    P(f'buffer_store_dwordx4 {v(GA + 4, 4)}, {v(vt)}, {s(WS, 4)}, s{T1} offen')
    stamp(P, 8)
    endpgm(P, 9)
    P.label('kb_done')
    P('s_endpgm')
    return P


KW_LDS = 143360
GC0 = -2.0 * LOG2E * 0.7978845608028654
GC1 = GC0 * 0.044715


def gelu_group(P, xs, tmp, sc1, vc0):
    ts = [tmp + 2 * i for i in range(len(xs))]
    for x, t in zip(xs, ts):
        P(f'v_pk_mul_f32 {v(t, 2)}, {v(x, 2)}, {v(x, 2)}')
    for x, t in zip(xs, ts):
        P(f'v_pk_fma_f32 {v(t, 2)}, {v(t, 2)}, {s(sc1, 2)}, {v(vc0, 2)}')
    for x, t in zip(xs, ts):
        P(f'v_pk_mul_f32 {v(t, 2)}, {v(t, 2)}, {v(x, 2)}')
    for x, t in zip(xs, ts):
        P(f'v_exp_f32 {v(t)}, {v(t)}')
        P(f'v_exp_f32 {v(t + 1)}, {v(t + 1)}')
    for x, t in zip(xs, ts):
        P(f'v_pk_add_f32 {v(t, 2)}, {v(t, 2)}, 1.0 op_sel_hi:[1,0]')
    for x, t in zip(xs, ts):
        P(f'v_rcp_f32 {v(t)}, {v(t)}')
        P(f'v_rcp_f32 {v(t + 1)}, {v(t + 1)}')
    for x, t in zip(xs, ts):
        P(f'v_pk_mul_f32 {v(x, 2)}, {v(x, 2)}, {v(t, 2)}')


KS_RB = 12
Z2B = 61440
KS_A = KS_RB * 7168
KG_LDS = KS_A + 4 * 16384
KO_RS = 336
SPIN = 20000


def gen_kg():
    P = Prog('kg_kernel')
    WS, BS, SP, MS = 4, 8, 12, 16
    W, W10, RW, JT, PAR, J, H, T0, T1, T2, AO, GO, CNT, LA, SAO, UO, RB, XO = range(20, 38)
    C1, M1, XM = 38, 40, 42
    P('s_cmp_ge_u32 s2, 256')
    P('s_cbranch_scc1 kg_done')
    stamp(P, 0)
    srd(P, WS, KA_WS, WS_END)
    srd(P, SP, KA_WSP, S * 4096)
    C = Alloc(1, 256)
    vl, vl16, vl8, vt, vu, vb, vb2, vh, vg = [C.get() for _ in range(9)]
    vsrc = [C.get() for _ in range(4)]
    var = [C.get() for _ in range(4)]
    BASE = C.n

    def ldsb(E, dst, off):
        E(f'ds_read_b128 {v(dst, 4)}, {v((vl16, vb, vb2)[off >> 16])} offset:{off & 65535}')

    def tile_srd(E, reg, size):
        E(f's_add_u32 s{BS}, s{WS}, s{reg}\ns_addc_u32 s{BS + 1}, s{WS + 1}, 0')
        E(f's_mov_b32 s{BS + 2}, {size}')

    def spin(name, load, test):
        P(f's_mov_b32 s{CNT}, 0')
        test()
        P(f's_cbranch_scc1 {name}_ok')
        P.label(f'{name}_again')
        P(f's_sleep {SLEEP}')
        load()
        P(f's_add_u32 s{CNT}, s{CNT}, 1')
        test()
        P(f's_cbranch_scc1 {name}_ok')
        P(f's_cmp_lt_u32 s{CNT}, {SPIN}')
        P(f's_cbranch_scc1 {name}_again')
        P.label(f'{name}_ok')

    def no_sentinel(regs):
        def test():
            r = list(regs)
            if len(r) == 1:
                P(f'v_cmp_eq_u32 vcc, -1, {v(r[0])}')
            else:
                first = r.pop(0)
                while r:
                    if len(r) >= 2:
                        P(f'v_max3_u32 {v(vt)}, {v(first)}, {v(r.pop(0))}, {v(r.pop(0))}')
                    else:
                        P(f'v_max_u32 {v(vt)}, {v(first)}, {v(r.pop(0))}')
                    first = vt
                P(f'v_cmp_eq_u32 vcc, -1, {v(vt)}')
            P('s_cmp_eq_u64 vcc, 0')
        return test

    A = Alloc(BASE, 256)
    va1, vgr, vx8 = [A.get() for _ in range(3)]
    vc0 = A.get(2)
    acc2 = [[A.get(4) for b in range(4)] for mb in range(2)]
    acc1 = [[A.get(4) for b in range(3)] for mb in range(2)]
    vxw, vxr, vgl, vtw, vtr = [A.get() for _ in range(5)]
    Bf = [[A.get(4) for b in range(4)] for _ in range(2)]
    tmp = A.get(8)
    pk = [A.get(4) for _ in range(8)]
    stt = A.get(16)
    GR = A.get(16)
    Af = [[(ks * 2 + mb) * 4 for ks in range(20)] for mb in range(2)]
    P(f'v_readfirstlane_b32 s{W}, v0')
    P(f'v_and_b32 {v(vl)}, 63, v0')
    P(f'v_lshlrev_b32 {v(vl16)}, 4, {v(vl)}')
    P(f'v_add_u32 {v(va1)}, 20480, {v(vl16)}')
    P(f's_and_b32 s{T0}, s2, 3')
    P(f's_bfe_u32 s{T1}, s2, 0x20003')
    P(f's_lshl2_add_u32 s{T2}, s{T0}, s{T1}')
    P(f's_bfe_u32 s{H}, s2, 0x10002')
    P(f's_lshr_b32 s{J}, s2, 5')
    P(f's_lshl3_add_u32 s{JT}, s{H}, s{J}')
    P(f's_lshr_b32 s{W}, s{W}, 6')
    P(f's_mul_i32 s{T0}, s{JT}, 143360')
    P(f's_add_u32 s{T0}, s{T0}, {WIN_OFF}')
    P(f's_lshl2_add_u32 s{RW}, s{T2}, s{W}')
    P(f's_mul_i32 s{AO}, s{RW}, 40960')
    P(f's_add_u32 s{AO}, s{AO}, {H2_OFF}')
    P(f's_lshl_b32 s{W10}, s{W}, 10')
    P(f's_add_u32 m0, s{W10}, {Z2B}')
    tile_srd(P, T0, 143360)
    P(f's_mov_b32 s{BS + 3}, 0x20000')
    nb = [0]

    def dma_upto(E, n, tag):
        while nb[0] < n:
            i = nb[0]
            if i:
                E('s_add_u32 m0, m0, 4096')
            E(f'buffer_load_dwordx4 {v(vl16)}, {s(BS, 4)}, m0 offen lds', tw=[f'{tag}{i}'])
            nb[0] += 1

    def issueW(E, ks):
        dma_upto(E, ks + 1, 'W')
        for mb in range(2):
            E(f'buffer_load_dwordx4 {a(Af[mb][ks], 4)}, {v((vl16, va1)[mb])}, {s(WS, 4)}, s{AO} offen offset:{1024 * (ks % 4)}')
        if ks % 4 == 3:
            E(f's_add_u32 s{AO}, s{AO}, 4096')

    LEAD = KW_LEAD
    for ks in range(LEAD):
        issueW(P, ks)
    stamp(P, 1)
    P(f's_and_b32 s{PAR}, s{JT}, 1')
    P(f's_mov_b32 s{C1}, {fl(GC1)}')
    P(f's_mov_b32 s{C1 + 1}, {fl(GC1)}')
    P(f'v_mov_b32 {v(vc0)}, {fl(GC0)}')
    P(f'v_mov_b32 {v(vc0 + 1)}, {fl(GC0)}')
    P(f'v_add_u32 {v(vb)}, 65536, {v(vl16)}')
    P(f'v_add_u32 {v(vb2)}, 131072, {v(vl16)}')
    P(f'v_lshlrev_b32 {v(vl8)}, 3, {v(vl)}')
    P(f'v_and_b32 {v(vx8)}, 255, {v(vl8)}')
    P(f's_lshl_b32 s{T0}, s{PAR}, 3')
    P(f's_lshl_b32 s{XM}, 0x00ff00ff, s{T0}')
    P(f's_mov_b32 s{XM + 1}, s{XM}')
    P(f's_mov_b32 s{M1}, 0xaaaaaaaa')
    P(f's_mov_b32 s{M1 + 1}, 0xaaaaaaaa')
    P(f'v_and_b32 {v(vh)}, 15, v0')
    P(f'v_bfe_u32 {v(vg)}, v0, 4, 2')
    P(f'v_lshrrev_b32 {v(vt)}, 2, {v(vl)}')
    P(f'v_and_b32 {v(vu)}, 1, v0')
    P(f'v_lshl_add_u32 {v(vt)}, {v(vt)}, 1, {v(vu)}')
    P(f'v_lshlrev_b32 {v(vgr)}, 3, {v(vt)}')
    P(f'v_lshrrev_b32 {v(vt)}, 5, {v(vl)}')
    P(f'v_lshl_add_u32 {v(vgl)}, {v(vt)}, 11, {v(vx8)}')
    P(f'v_bfe_u32 {v(vt)}, v0, 2, 1')
    P(f'v_bfe_u32 {v(vu)}, v0, 3, 2')
    P(f'v_lshl_add_u32 {v(vt)}, {v(vt)}, 2, {v(vu)}')
    P(f'v_and_b32 {v(vu)}, 3, v0')
    P(f'v_lshl_add_u32 {v(vt)}, {v(vt)}, 2, {v(vu)}')
    P(f's_lshl_b32 s{T0}, s{W}, 8')
    P(f's_add_u32 s{T0}, s{T0}, {Z2B}')
    P(f'v_lshl_add_u32 {v(vtw)}, {v(vt)}, 2, s{T0}')
    P(f'v_lshl_add_u32 {v(vtr)}, {v(vg)}, 4, s{T0}')
    P(f's_add_u32 s{T0}, s{W10}, {Z2B + 1024}')
    P(f'v_lshlrev_b32 {v(vxw)}, 6, {v(vh)}')
    P(f'v_lshl_add_u32 {v(vxw)}, {v(vg)}, 3, {v(vxw)}')
    P(f'v_add_u32 {v(vxw)}, s{T0}, {v(vxw)}')
    P(f's_lshl_b32 s{T1}, s{PAR}, 9')
    P(f's_sub_u32 s{T0}, s{T0}, s{T1}')
    P(f's_add_u32 s{T0}, s{T0}, 512')
    P(f'v_bfe_u32 {v(vt)}, v0, 2, 3')
    P(f'v_lshlrev_b32 {v(vt)}, 6, {v(vt)}')
    P(f'v_lshl_add_u32 {v(vt)}, {v(vu)}, 3, {v(vt)}')
    P(f'v_add_u32 {v(vxr)}, s{T0}, {v(vt)}')
    P(f's_lshl_b32 s{GO}, s{RW}, 12')
    P(f's_add_u32 s{GO}, s{GO}, {GRAN_OFF}')
    P(f'v_lshrrev_b32 {v(vt)}, 3, {v(vl)}')
    P(f'v_and_b32 {v(vu)}, 7, v0')
    P(f'v_xor_b32 {v(vu)}, {v(vu)}, {v(vg)}')
    P(f'v_lshlrev_b32 {v(vt)}, 12, {v(vt)}')
    P(f'v_lshl_add_u32 {v(vsrc[0])}, {v(vu)}, 4, {v(vt)}')
    P(f'v_xor_b32 {v(vt)}, 64, {v(vsrc[0])}')
    P(f'v_add_u32 {v(vsrc[1])}, {32768 - 1024}, {v(vt)}')
    P(f'v_add_u32 {v(vsrc[2])}, {2 * (32768 - 1024)}, {v(vsrc[0])}')
    P(f'v_add_u32 {v(vsrc[3])}, {3 * (32768 - 1024)}, {v(vt)}')
    P(f's_lshl_b32 s{SAO}, s{RW}, 17')
    P(f's_lshl_b32 s{T1}, s{H}, 11')
    P(f's_add_u32 s{SAO}, s{SAO}, s{T1}')
    P(f's_lshl_b32 s{LA}, s{W}, 14')
    P(f's_add_u32 s{LA}, s{LA}, {KS_A}')
    P(f'v_bfe_u32 {v(vt)}, v0, 1, 3')
    P(f'v_lshrrev_b32 {v(vu)}, 1, {v(vg)}')
    P(f'v_xor_b32 {v(vt)}, {v(vt)}, {v(vu)}')
    P(f'v_lshlrev_b32 {v(vt)}, 4, {v(vt)}')
    P(f'v_lshl_add_u32 {v(vt)}, {v(vh)}, 7, {v(vt)}')
    P(f'v_and_b32 {v(vu)}, 1, {v(vg)}')
    P(f'v_lshl_add_u32 {v(vt)}, {v(vu)}, 3, {v(vt)}')
    P(f'v_add_u32 {v(var[0])}, s{LA}, {v(vt)}')
    for c in range(1, 4):
        P(f'v_xor_b32 {v(var[c])}, {32 * c}, {v(var[0])}')

    def syncW(ks):
        P.need(*[f'W{i}' for i in range(ks + 1)])
        P('s_barrier')

    def z1_dma(E, i):
        E(f's_add_u32 m0, s{W10}, {4096 * i}')
        E(f'buffer_load_dwordx4 {v(vl16)}, {s(BS, 4)}, m0 offen lds', tw=['Y'])

    syncW(0)
    for b in range(4):
        ldsb(P, Bf[0][b], Z2B + b * 1024)
    stamp(P, 2)
    ny = 0
    for ks in range(20):
        side = Rec(P)
        if ks + 1 < 20:
            if ks % KW_SYNC == 0:
                syncW(min(ks + KW_SYNC, 19))
            P('s_waitcnt lgkmcnt(0)')
            for b in range(4):
                ldsb(side, Bf[(ks + 1) & 1][b], Z2B + ((ks + 1) * 4 + b) * 1024)
        if ks + LEAD < 20:
            issueW(side, ks + LEAD)
        else:
            for _ in range(KW_YRATE):
                if ny < 15:
                    z1_dma(side, ny)
                    ny += 1
        main = [lambda b=b, mb=mb: mfma(P, v(acc2[mb][b], 4), a(Af[mb][ks], 4), v(Bf[ks & 1][b], 4),
                                        v(acc2[mb][b], 4) if ks else '0') for b in range(4) for mb in range(2)]
        weave(P, main, side.q, 2)
        for o in side.q:
            o()
    stamp(P, 3)

    def issueA(E, st):
        for i in range(4):
            pre = f's_add_u32 m0, s{LA}, {(st % 4) * 4096}\n' if i == 0 else ''
            post = f'\ns_add_u32 s{SAO}, s{SAO}, 128' if i == 3 else ''
            E(pre + f'buffer_load_dwordx4 {v(vsrc[i])}, {s(SP, 4)}, s{SAO} offen offset:{1024 * i} lds' + post, tw=[f'A{st}'])

    P('s_barrier')
    pre = Rec(P)
    for i in range(ny, 15):
        pre.q.append(lambda i=i: z1_dma(P, i))
    for st in range(KS_LEAD // 2):
        issueA(pre, st)
    V = Rec(P)
    for b in range(4):
        xs = [acc2[0][b], acc2[0][b] + 2, acc2[1][b], acc2[1][b] + 2]
        gelu_group(V, xs, tmp, C1, vc0)
        if b == 3:
            for k, x in enumerate(xs):
                V(f'v_cvt_pk_bf16_f32 {v(pk[3] + k)}, {v(x)}, {v(x + 1)}')
            for mb in range(2):
                V(f'ds_write_b64 {v(vxw)}, {v(pk[3] + 2 * mb, 2)} offset:{32 * mb}')
            for x in xs:
                for e in range(2):
                    V(f'v_cndmask_b32 {v(x + e)}, 0, {v(x + e)}, {s(XM, 2)}')
            for tb in range(2):
                V(f'ds_read_b64_tr_b16 {v(pk[3] + 2 * tb, 2)}, {v(vxr)} offset:{32 * tb}')
        for k, x in enumerate(xs):
            sm, sq = stt + 2 * k, stt + 8 + 2 * k
            if b == 0:
                V(f'v_pk_mul_f32 {v(sq, 2)}, {v(x, 2)}, {v(x, 2)}')
            else:
                y = [acc2[0][0], acc2[0][0] + 2, acc2[1][0], acc2[1][0] + 2][k] if b == 1 else sm
                V(f'v_pk_add_f32 {v(sm, 2)}, {v(x, 2)}, {v(y, 2)}')
                V(f'v_pk_fma_f32 {v(sq, 2)}, {v(x, 2)}, {v(x, 2)}, {v(sq, 2)}')
    for base in (stt, stt + 8):
        for k in range(4):
            dpp_add(V, base + k, base + k, base + k, 'row_ror:8', bank=0x3)
    for base in (stt, stt + 8):
        for k in range(4):
            dpp_add(V, base + k, base + 4 + k, base + 4 + k, 'row_ror:8', bank=0xc)
    for base in (stt, stt + 8):
        for k in range(2):
            dpp_add(V, base + k, base + k, base + k, 'row_half_mirror', bank=0x5)
    for base in (stt, stt + 8):
        for k in range(2):
            dpp_add(V, base + k, base + 2 + k, base + 2 + k, 'row_half_mirror', bank=0xa)
    for ctl in ('quad_perm:[2,3,0,1]', 'quad_perm:[1,0,3,2]'):
        for base in (stt, stt + 8):
            for k in range(2):
                dpp_add(V, base + k, base + k, base + k, ctl)
    V(f'v_cndmask_b32 {v(stt)}, {v(stt)}, {v(stt + 1)}, {s(M1, 2)}')
    V(f'v_cndmask_b32 {v(stt + 1)}, {v(stt + 8)}, {v(stt + 9)}, {s(M1, 2)}')
    V(f'v_and_b32 {v(stt)}, -2, {v(stt)}')
    V(f'v_and_b32 {v(stt + 1)}, -2, {v(stt + 1)}')
    V(f's_lshl_b32 s{T0}, s{JT}, 8')
    V(f's_add_u32 s{T0}, s{T0}, s{GO}')
    V(f's_mov_b32 exec_lo, 0x33333333\ns_mov_b32 exec_hi, 0x33333333\n'
      f'buffer_store_dwordx2 {v(stt, 2)}, {v(vgr)}, {s(WS, 4)}, s{T0} offen{FLAGM}\ns_mov_b64 exec, -1')
    weave(P, list(pre.q), V.q, len(V.q) // (len(pre.q) + 3))
    for o in V.q:
        o()
    stamp(P, 4)

    def poll_gran():
        for k in range(8):
            P(f'buffer_load_dwordx2 {v(GR + 2 * k, 2)}, {v(vgl)}, {s(WS, 4)}, s{GO} offen offset:{256 * k}{FLAGM}')

    def z1_reads(E, ks):
        for b in range(3):
            ldsb(E, Bf[ks & 1][b], (ks * 3 + b) * 1024)

    def z1_steps(k0, k1):
        for ks in range(k0, k1):
            side = Rec(P)
            P('s_waitcnt lgkmcnt(0)')
            if ks + 1 < 20:
                z1_reads(side, ks + 1)
            if ks == KW_POLL:
                poll_gran()
            main = [lambda b=b, mb=mb: mfma(P, v(acc1[mb][b], 4), v(Bf[ks & 1][b], 4), a(Af[mb][ks], 4),
                                            v(acc1[mb][b], 4) if ks else '0') for b in range(3) for mb in range(2)]
            weave(P, main, side.q, 1)

    def z1_gelu(n):
        xs, dst = [([acc1[0][0], acc1[0][0] + 2, acc1[0][1], acc1[0][1] + 2], pk[0]),
                   ([acc1[1][0], acc1[1][0] + 2, acc1[1][1], acc1[1][1] + 2], pk[1]),
                   ([acc1[0][2], acc1[0][2] + 2, acc1[1][2], acc1[1][2] + 2], pk[2])][n]
        gelu_group(P, xs, tmp, C1, vc0)
        for k, x in enumerate(xs):
            P(f'v_cvt_pk_bf16_f32 {v(dst + k)}, {v(x)}, {v(x + 1)}')

    P.need('Y')
    P('s_barrier')
    z1_reads(P, 0)
    z1_steps(0, KW_Z1A)
    stamp(P, 5)
    spin('kg_g', poll_gran, no_sentinel(range(GR, GR + 16)))
    stamp(P, 6)
    for st_ in (4, 2, 1):
        for k in range(st_):
            P(f'v_pk_add_f32 {v(GR + 2 * k, 2)}, {v(GR + 2 * k, 2)}, {v(GR + 2 * (k + st_), 2)}')
    for e in range(2):
        P(f'v_mov_b32 {v(GR + 2 + e)}, {v(GR + e)}')
    for e in range(2):
        P(f'v_permlane32_swap_b32 {v(GR + e)}, {v(GR + 2 + e)}')
    P(f'v_pk_add_f32 {v(GR, 2)}, {v(GR, 2)}, {v(GR + 2, 2)}')
    ln_finish(P, [(GR, GR + 1)], FH, [tmp])
    P(f'ds_write_b32 {v(vtw)}, {v(GR)}')
    P(f'ds_write_b32 {v(vtw)}, {v(GR + 1)} offset:128')
    for mb in range(2):
        P(f'ds_read_b128 {v(stt + 4 * mb, 4)}, {v(vtr)} offset:{64 * mb}')
        P(f'ds_read_b128 {v(stt + 8 + 4 * mb, 4)}, {v(vtr)} offset:{128 + 64 * mb}')
    P(f's_lshr_b32 s{T0}, s{JT}, 1')
    P(f's_lshl_b32 s{T0}, s{T0}, 6')
    P(f's_add_u32 s{T2}, s{T0}, s{RW}')
    P(f's_mul_i32 s{T0}, s{T2}, 7168')
    P(f's_add_u32 s{T0}, s{T0}, {Z2_OFF}')
    P(f's_lshl_b32 s{T1}, s{PAR}, 11')
    P(f's_add_u32 s{AO}, s{T0}, s{T1}')
    P(f's_lshl_b32 s{T1}, s{PAR}, 10')
    P(f's_add_u32 s{T1}, s{T0}, s{T1}')
    P(f's_add_u32 s{T1}, s{T1}, 4096')
    P(f's_add_u32 s{T0}, s{T0}, 6144')
    for b in range(4):
        xs = [acc2[0][b], acc2[0][b] + 2, acc2[1][b], acc2[1][b] + 2]
        for k, x in enumerate(xs):
            P(f'v_pk_fma_f32 {v(x, 2)}, {v(x, 2)}, {v(stt + 8 + 2 * k, 2)}, {v(stt + 2 * k, 2)}')
        for k, x in enumerate(xs):
            P(f'v_cvt_pk_bf16_f32 {v(pk[4 + b] + k)}, {v(x)}, {v(x + 1)}')
        if b < 2:
            P(f'buffer_store_dwordx4 {v(pk[4 + b], 4)}, {v(vl16)}, {s(WS, 4)}, s{AO} offen offset:{1024 * b} sc1', tw=['Z'])
        elif b == 2:
            P(f'buffer_store_dwordx4 {v(pk[4 + b], 4)}, {v(vl16)}, {s(WS, 4)}, s{T1} offen sc1', tw=['Z'])
        else:
            P(f's_mov_b64 exec, {s(XM, 2)}')
            P(f'buffer_store_dwordx4 {v(pk[4 + b], 4)}, {v(vl16)}, {s(WS, 4)}, s{T0} offen sc1', tw=['Z'])
            P('s_mov_b64 exec, -1')
    stamp(P, 7)
    z1_steps(KW_Z1A, 20)
    for n in range(KW_G1):
        z1_gelu(n)

    def z1_rest():
        for n in range(KW_G1, 3):
            z1_gelu(n)

    def z1_store():
        P(f's_mul_i32 s{T0}, s{RW}, {2 * 112 * 256}')
        P(f's_lshr_b32 s{T1}, s{JT}, 1')
        P(f's_mul_i32 s{T1}, s{T1}, {14 * 256}')
        P(f's_add_u32 s{T0}, s{T0}, s{T1}')
        P(f's_add_u32 s{T0}, s{T0}, {Z1_OFF}')
        P(f's_lshl_b32 s{T1}, s{PAR}, 10')
        P(f's_add_u32 s{AO}, s{T0}, s{T1}')
        P(f's_lshl_b32 s{T1}, s{PAR}, 9')
        P(f's_add_u32 s{T1}, s{T0}, s{T1}')
        P(f's_lshl_b32 s{XO}, s{PAR}, 8')
        P(f's_add_u32 s{T0}, s{T0}, s{XO}')
        for tb in range(2):
            P(f'buffer_store_dwordx4 {v(pk[tb], 4)}, {v(vl16)}, {s(WS, 4)}, s{AO} offen sc1', tw=['Z1'])
            P(f'buffer_store_dwordx2 {v(pk[2] + 2 * tb, 2)}, {v(vl8)}, {s(WS, 4)}, s{T1} offen offset:2048 sc1', tw=['Z1'])
            P('s_mov_b32 exec_hi, 0')
            P(f'buffer_store_dwordx2 {v(pk[3] + 2 * tb, 2)}, {v(vl8)}, {s(WS, 4)}, s{T0} offen offset:3072 sc1', tw=['Z1'])
            P('s_mov_b32 exec_hi, -1')
            if tb == 0:
                for r in (AO, T1, T0):
                    P(f's_add_u32 s{r}, s{r}, {112 * 256}')

    def handoff(name, tok, nlane, wr_off, rd_off, FL, st, between=None):
        def lanes():
            P(f's_mov_b32 exec_lo, {(1 << nlane) - 1:#x}' if nlane < 32 else 's_mov_b32 exec_lo, -1')
            P('s_mov_b32 exec_hi, 0')

        P(f'v_mov_b32 {v(FL)}, 0')
        P(f'v_lshlrev_b32 {v(vu)}, 7, {v(vl)}')
        P.need(tok)
        P('s_barrier')
        stamp(P, st)
        P(f's_cmp_lg_u32 s{W}, 0')
        P(f's_cbranch_scc1 {name}_sent')
        P('s_mov_b64 exec, 1')
        P(f'buffer_store_dword {v(FL)}, {v(FL)}, {s(WS, 4)}, s{wr_off} offen{FLAGM}')
        P('s_mov_b64 exec, -1')
        P.label(f'{name}_sent')
        if between:
            between()
        P(f's_cmp_lg_u32 s{W}, 0')
        P(f's_cbranch_scc1 {name}_ok')
        lanes()

        def poll():
            P(f'buffer_load_dword {v(FL + 1)}, {v(vu)}, {s(WS, 4)}, s{rd_off} offen{FLAGM}')

        poll()
        spin(name, poll, no_sentinel([FL + 1]))
        P('s_mov_b64 exec, -1')
        P('s_barrier')

    FL = GR
    A = Alloc(BASE, 256)
    FLS = A.get(2)
    accS = [[A.get(4) for b in range(7)] for mb in range(2)]
    BfS = [[A.get(4) for b in range(7)] for _ in range(2)]
    AfS = [[A.get(4) for mb in range(2)] for _ in range(2)]
    Z1 = [A.get(16) for _ in range(2)]
    OUT = [A.get(12) for _ in range(2)]
    OX = A.get(4)
    vbs = [A.get(2) for _ in range(2)]
    tmp = A.get(8)
    vxo = A.get()
    P(f's_lshr_b32 s{T0}, s{JT}, 1')
    P(f's_lshr_b32 s{T1}, s{RW}, 2')
    P(f's_lshl4_add_u32 s{T2}, s{T0}, s{T1}')
    P(f's_lshl1_add_u32 s{T2}, s{T2}, s{PAR}')
    P(f's_lshl_b32 s{T2}, s{T2}, 7')
    P(f's_add_u32 s{T2}, s{T2}, {FL1_OFF}')
    P(f's_lshl_b32 s{GO}, s{J}, 12')
    P(f's_add_u32 s{GO}, s{GO}, {FL1_OFF}')
    srd(P, MS, KA_BSP, 4096)
    P(f's_lshl1_add_u32 s{T0}, s{J}, s{H}')
    P(f's_mul_i32 s{T0}, s{T0}, {32 * 7168}')
    P(f's_add_u32 s{T0}, s{T0}, {Z2_OFF}')
    tile_srd(P, T0, KS_A)
    P(f's_mul_i32 s{UO}, s{RW}, {2 * 112 * 256}')
    P(f's_mul_i32 s{T1}, s{J}, {14 * 256}')
    P(f's_add_u32 s{UO}, s{UO}, s{T1}')
    P('s_waitcnt lgkmcnt(0)')
    handoff('kg_f', 'Z', 32, T2, GO, FL, 8, z1_rest)
    stamp(P, 9)
    nb[0] = 0

    def issueB(E, k):
        while nb[0] < (7 * (k + 1) + 3) // 4:
            i = nb[0]
            if i and (4096 * i) % KS_A == 0:
                E(f's_add_u32 s{BS}, s{BS}, {KS_A}\ns_addc_u32 s{BS + 1}, s{BS + 1}, 0')
            E(f's_add_u32 m0, s{W10}, {(4096 * i) % KS_A}')
            E(f'buffer_load_dwordx4 {v(vl16)}, {s(BS, 4)}, m0 offen sc1 lds', tw=[f'B{i}'])
            nb[0] += 1

    LEAD = KS_LEAD
    for k in range(LEAD):
        issueB(P, k)
        if k == 1:
            z1_store()

    def syncS(k):
        P.need(*[f'A{q}' for q in range((k >> 1) + 1)], *[f'B{i}' for i in range((7 * (k + 1) + 3) // 4)])
        P('s_barrier')

    def readsS(E, k):
        for mb in range(2):
            for e in range(2):
                E(f'ds_read_b64 {v(AfS[k & 1][mb] + 2 * e, 2)}, {v(var[2 * (k & 1) + e])} offset:{((k >> 1) % 4) * 4096 + 2048 * mb}')
        for b in range(7):
            ldsb(E, BfS[k & 1][b], (k % KS_RB) * 7168 + 1024 * b)

    syncS(0)
    readsS(P, 0)

    def poll_z1():
        P(f'buffer_load_dword {v(FLS + 1)}, {v(FLS)}, {s(WS, 4)}, s{GO} offen{FLAGM}')

    stamp(P, 10)
    for k in range(32):
        if k == 16:
            stamp(P, 11)
        side = Rec(P)
        if k == 29 - LEAD:
            P(f's_lshr_b32 s{T0}, s{RW}, 2')
            P(f's_lshl4_add_u32 s{GO}, s{J}, s{T0}')
            P(f's_lshl_b32 s{GO}, s{GO}, 8')
            P(f's_add_u32 s{GO}, s{GO}, {FL0_OFF}')
            P(f'v_and_b32 {v(FLS)}, 1, v0')
            P(f'v_lshlrev_b32 {v(FLS)}, 7, {v(FLS)}')
            poll_z1()
        if k == 33 - LEAD:
            spin('kg_y', poll_z1, no_sentinel([FLS + 1]))
        if k + 1 < 32:
            if k % KS_SYNC == 0:
                if k == 8:
                    P.need('Z1')
                syncS(min(k + KS_SYNC, 31))
            if k == 8:
                P(f's_cmp_lg_u32 s{W}, 0')
                P('s_cbranch_scc1 kg_z1sent')
                P(f's_add_u32 s{T2}, s{T2}, {FL0_OFF - FL1_OFF}')
                P(f'v_mov_b32 {v(FLS)}, 0')
                P('s_mov_b64 exec, 1')
                P(f'buffer_store_dword {v(FLS)}, {v(FLS)}, {s(WS, 4)}, s{T2} offen{FLAGM}')
                P('s_mov_b64 exec, -1')
                P.label('kg_z1sent')
            P('s_waitcnt lgkmcnt(0)')
            readsS(side, k + 1)
        if k + LEAD < 32 and (k + LEAD) % 2 == 0:
            issueA(side, (k + LEAD) // 2)
        issueB(side, min(31, k + min(KS_LEADB, LEAD + 1 + k)))
        if k == 32 - LEAD:
            side(f's_lshl_b32 s{T1}, s{RW}, 6')
            side(f'v_lshlrev_b32 {v(vt)}, 1, {v(vh)}')
            for tb in range(2):
                side(f'buffer_load_ushort {v(vbs[tb])}, {v(vt)}, {s(MS, 4)}, s{T1} offen offset:{32 * tb}')
            side(f's_add_u32 s{T0}, s{UO}, {Z1_OFF}')
        if 0 <= k - (33 - LEAD) < 2:
            tb = k - (33 - LEAD)
            for jj in range(2):
                side(f'buffer_load_dwordx4 {v(Z1[tb] + 4 * jj, 4)}, {v(vl16)}, {s(WS, 4)}, s{T0} offen offset:{1024 * jj} sc1')
            for jj in range(3):
                side(f'buffer_load_dwordx2 {v(Z1[tb] + 8 + 2 * jj, 2)}, {v(vl8)}, {s(WS, 4)}, s{T0} offen offset:{2048 + 512 * jj} sc1')
            side(f's_add_u32 s{T0}, s{T0}, {112 * 256}')
        main = [lambda b=b, mb=mb: mfma(P, v(accS[mb][b], 4), v(BfS[k & 1][b], 4), v(AfS[k & 1][mb], 4),
                                        v(accS[mb][b], 4) if k else '0') for b in range(7) for mb in range(2)]
        weave(P, main, side.q, 2)
        for o in side.q:
            o()
    stamp(P, 12)
    P(f's_bfe_u32 s{T0}, s2, 0x10002')
    P(f's_lshr_b32 s{T1}, s2, 6')
    P(f's_lshl2_add_u32 s{JT}, s{T0}, s{T1}')
    P(f's_mul_i32 s{T0}, s{JT}, 143360')
    P(f's_add_u32 s{T0}, s{T0}, {WOUT_OFF}')
    tile_srd(P, T0, 143360)
    P(f's_mov_b32 m0, s{W10}')
    P(f's_mul_i32 s{T0}, s{H}, {U_HALF}')
    P(f's_add_u32 s{UO}, s{UO}, s{T0}')
    P(f's_add_u32 s{UO}, s{UO}, {U_OFF}')
    P(f's_add_u32 s{T1}, s{UO}, {112 * 256}')
    P(f's_sub_u32 s{T0}, s{H}, 1')
    P(f'v_lshrrev_b32 {v(vt)}, 1, {v(vg)}')
    P(f'v_lshl_add_u32 {v(vt)}, {v(vt)}, 4, {v(vh)}')
    P(f'v_and_b32 {v(vu)}, 1, {v(vg)}')
    P(f'v_mul_u32_u24 {v(vu)}, {112 * 256}, {v(vu)}')
    P(f'v_lshl_add_u32 {v(vxo)}, {v(vt)}, 4, {v(vu)}')
    for tb in range(2):
        P(f'v_lshlrev_b32 {v(vbs[tb])}, 16, {v(vbs[tb])}')
        P(f'v_and_b32 {v(vbs[tb])}, s{T0}, {v(vbs[tb])}')
    P('s_barrier')
    nb[0] = 0
    pre = Rec(P)
    for i in range(35):
        one = Rec(P)
        dma_upto(one, i + 1, 'O')
        pre.q.append(lambda q=one.q: [o() for o in q])
    V = Rec(P)
    for b, tb in [(6, 0), (6, 1)] + [(b, tb) for tb in range(2) for b in range(6)]:
        dst = OX + 2 * tb if b == 6 else OUT[tb] + 2 * b
        for h in range(2):
            x = accS[tb][b] + 2 * h
            t = tmp + 4 * (b & 1 ^ tb) + 2 * h
            unpack(V, t, t + 1, Z1[tb] + 2 * b + h)
            V(f'v_pk_add_f32 {v(x, 2)}, {v(x, 2)}, {v(vbs[tb], 2)} op_sel_hi:[1,0]')
        for h in range(2):
            x = accS[tb][b] + 2 * h
            t = tmp + 4 * (b & 1 ^ tb) + 2 * h
            V(f'v_pk_mul_f32 {v(x, 2)}, {v(x, 2)}, {v(t, 2)}')
        for h in range(2):
            x = accS[tb][b] + 2 * h
            V(f'v_cvt_pk_bf16_f32 {v(dst + h)}, {v(x)}, {v(x + 1)}')
        if b == 0 and tb == 0:
            for h in range(2):
                V(f'v_permlane16_swap_b32 {v(OX + h)}, {v(OX + 2 + h)}')
            V(f'buffer_store_dwordx4 {v(OX, 4)}, {v(vxo)}, {s(WS, 4)}, s{UO} offen offset:3072 sc1', tw=['U'])
        if b < 6 and b & 1:
            V(f'buffer_store_dwordx4 {v(OUT[tb] + 2 * b - 2, 4)}, {v(vl16)}, {s(WS, 4)}, s{(UO, T1)[tb]} offen offset:{512 * (b - 1)} sc1', tw=['U'])
    npre = KO_PRE
    weave(P, pre.q[:npre], V.q, len(V.q) // npre + 1)
    for o in V.q:
        o()
    stamp(P, 13)
    A = Alloc(BASE, 256)
    FL = A.get(2)
    vu1, vw, vr, vo, vo2, vgb = [A.get() for _ in range(6)]
    accO = [[A.get(4) for nb_ in range(5)] for h in range(2)]
    BfO = [[A.get(4) for nb_ in range(5)] for _ in range(2)]
    GB = A.get(8)
    X1 = [A.get(4) for _ in range(3)]
    RD = [A.get(8) for _ in range(3)]
    tmp = A.get(8)
    Uf = [[(ks * 2 + h) * 4 for h in range(2)] for ks in range(28)]
    for o in pre.q[npre:npre + KO_PRE2]:
        o()
    P(f's_lshl1_add_u32 s{T2}, s{J}, s{H}')
    P(f's_lshr_b32 s{T0}, s{RW}, 2')
    P(f's_lshl4_add_u32 s{T2}, s{T0}, s{T2}')
    P(f's_lshl_b32 s{T2}, s{T2}, 7')
    P(f's_add_u32 s{T2}, s{T2}, {FL2_OFF}')
    srd(P, MS, KA_OUT, S * 1280)
    P(f's_and_b32 s{T0}, s2, 3')
    P(f's_bfe_u32 s{T1}, s2, 0x30003')
    P(f's_lshl3_add_u32 s{T0}, s{T0}, s{T1}')
    P(f's_lshl2_add_u32 s{RB}, s{T0}, s{W}')
    P(f's_lshr_b32 s{GO}, s{T0}, 1')
    P(f's_lshl_b32 s{GO}, s{GO}, 11')
    P(f's_add_u32 s{GO}, s{GO}, {FL2_OFF}')
    assert all((t * 6554) >> 16 == t // 10 for t in range(64))
    P(f'v_add_u32 {v(vu1)}, {U_HALF}, {v(vl16)}')
    P(f's_mul_i32 s{UO}, s{RB}, {112 * 256}')
    P(f's_add_u32 s{UO}, s{UO}, {U_OFF}')
    P(f'v_mul_u32_u24 {v(vt)}, 6554, {v(vl)}')
    P(f'v_lshrrev_b32 {v(vt)}, 16, {v(vt)}')
    P(f'v_mul_u32_u24 {v(vgb)}, 10, {v(vt)}')
    P(f'v_sub_u32 {v(vgb)}, {v(vl)}, {v(vgb)}')
    P(f's_mul_i32 s{T0}, s{W}, {16 * KO_RS}')
    P(f'v_mul_u32_u24 {v(vr)}, {KO_RS}, {v(vt)}')
    P(f'v_lshl_add_u32 {v(vr)}, {v(vgb)}, 5, {v(vr)}')
    P(f'v_add_u32 {v(vr)}, s{T0}, {v(vr)}')
    P(f'v_mul_u32_u24 {v(vo)}, 1280, {v(vt)}')
    P(f'v_lshl_add_u32 {v(vo)}, {v(vgb)}, 4, {v(vo)}')
    P(f'v_lshlrev_b32 {v(vgb)}, 5, {v(vgb)}')
    P(f'v_mov_b32 {v(vt)}, {OOB:#x}')
    P(f'v_cmp_gt_u32 vcc, 40, {v(vl)}')
    P(f'v_cndmask_b32 {v(vo2)}, {v(vt)}, {v(vo)}, vcc')
    P(f'v_cmp_gt_u32 vcc, 60, {v(vl)}')
    P(f'v_cndmask_b32 {v(vo)}, {v(vt)}, {v(vo)}, vcc')
    P(f'v_mul_u32_u24 {v(vw)}, {KO_RS}, {v(vh)}')
    P(f'v_lshl_add_u32 {v(vw)}, {v(vg)}, 4, {v(vw)}')
    P(f'v_add_u32 {v(vw)}, s{T0}, {v(vw)}')
    P(f's_mul_i32 s{XO}, s{RB}, {16 * 1280}')
    P(f's_mul_i32 s{T0}, s{JT}, 160')
    P(f's_add_u32 s{XO}, s{XO}, s{T0}')
    P(f's_lshl_b32 s{T0}, s{T0}, 1')
    P(f's_add_u32 s{T0}, s{T0}, {MOD_OFF + 5 * 2560}')
    P(f's_add_u32 s{T1}, s{XO}, {X1_OFF}')
    P('s_waitcnt lgkmcnt(0)')
    handoff('kg_u', 'U', 16, T2, GO, FL, 14, lambda: [o() for o in pre.q[npre + KO_PRE2:]])
    stamp(P, 15)

    def issueU(E, ks):
        for h in range(2):
            E(f'buffer_load_dwordx4 {a(Uf[ks][h], 4)}, {v((vl16, vu1)[h])}, {s(WS, 4)}, s{UO} offen offset:{1024 * (ks % 4)} sc1')
        if ks % 4 == 3:
            E(f's_add_u32 s{UO}, s{UO}, 4096')

    LEAD = KO_LEAD
    for ks in range(LEAD):
        issueU(P, ks)
    P.need(*[f'O{i}' for i in range(35)])
    P('s_barrier')

    def readsO(E, ks):
        for nb_ in range(5):
            ldsb(E, BfO[ks & 1][nb_], (ks * 5 + nb_) * 1024)

    readsO(P, 0)
    stamp(P, 16)
    for ks in range(28):
        side = Rec(P)
        if ks + 1 < 28:
            P('s_waitcnt lgkmcnt(0)')
            readsO(side, ks + 1)
        if ks + LEAD < 28:
            issueU(side, ks + LEAD)
        if ks == 28 - LEAD:
            for k in range(2):
                side(f'buffer_load_dwordx4 {v(GB + 4 * k, 4)}, {v(vgb)}, {s(WS, 4)}, s{T0} offen offset:{16 * k}')
            for r in range(3):
                side(f'buffer_load_dwordx4 {v(X1[r], 4)}, {v(vo if r < 2 else vo2)}, {s(WS, 4)}, s{T1} offen')
                if r < 2:
                    side(f's_add_u32 s{T1}, s{T1}, {6 * 1280}')
        if ks == 8:
            P('s_barrier')
        main = [lambda nb_=nb_, h=h: mfma(P, v(accO[h][nb_], 4), v(BfO[ks & 1][nb_], 4), a(Uf[ks][h], 4),
                                          v(accO[h][nb_], 4) if ks else '0') for nb_ in range(5) for h in range(2)]
        weave(P, main, side.q, 1)
        for o in side.q:
            o()
    stamp(P, 17)
    for nb_ in range(5):
        for h in range(2):
            P(f'v_pk_add_f32 {v(accO[0][nb_] + 2 * h, 2)}, {v(accO[0][nb_] + 2 * h, 2)}, {v(accO[1][nb_] + 2 * h, 2)}')
        P(f'ds_write_b128 {v(vw)}, {v(accO[0][nb_], 4)} offset:{64 * nb_}')
    for r in range(3):
        for k in range(2):
            P(f'ds_read_b128 {v(RD[r] + 4 * k, 4)}, {v(vr)} offset:{r * 6 * KO_RS + 16 * k}')
    for r in range(3):
        for k in range(4):
            unpack(P, tmp + 2 * k, tmp + 2 * k + 1, X1[r] + k)
        for k in range(4):
            P(f'v_pk_fma_f32 {v(RD[r] + 2 * k, 2)}, {v(RD[r] + 2 * k, 2)}, {v(GB + 2 * k, 2)}, {v(tmp + 2 * k, 2)}')
        for k in range(4):
            P(f'v_cvt_pk_bf16_f32 {v(X1[r] + k)}, {v(RD[r] + 2 * k)}, {v(RD[r] + 2 * k + 1)}')
        P(f'buffer_store_dwordx4 {v(X1[r], 4)}, {v(vo if r < 2 else vo2)}, {s(MS, 4)}, s{XO} offen{WTO}')
        if r < 2:
            P(f's_add_u32 s{XO}, s{XO}, {6 * 1280}')
    stamp(P, 18)
    endpgm(P, 19)
    P.label('kg_done')
    P('s_endpgm')
    return P


PREFETCH = True
WTO = ' sc1'
FLAGM = ' sc0 sc1'
SLEEP = 2
KS_LEADB = 6
KW_POLL, KW_Z1A, KW_G1, KW_YRATE = 7, 14, 2, 1
KW_LEAD, KW_SYNC, KS_LEAD, KS_SYNC, KO_LEAD, KO_PRE, KO_PRE2 = 5, 2, 6, 2, 10, 1, 12


def build(path):
    ks = [(gen_ka(), KA_GRID, 512, KA_LDS), (gen_kb(), 256, 512, KB_LDS), (gen_kg(), 256, 256, KG_LDS)]
    out = HEADER
    for P, g, b, l in ks:
        out += f'; @launch kernel={P.name} grid=({g},1,1) block=({b},1,1) lds={l}\n'
    out += '.amdgcn_target "amdgcn-amd-amdhsa--gfx950"\n.text\n'
    for P, g, b, l in (ks[0], ks[2], ks[1]):
        P.finish()
        out += P.text()
        print(P.name, 'instrs', len(P.items), 'regs', P.maxregs(), file=sys.stderr)
    out += '.p2align 8\n.type ctab,@object\nctab:\n'
    t = tables()
    for i in range(0, len(t), 8):
        out += '.long ' + ','.join('0x%x' % x for x in t[i:i + 8]) + '\n'
    out += f'.size ctab, {CT_SIZE}\ncode_end:\n'
    out += '.section .rodata,"a"\n'
    for P, g, b, l in ks:
        out += P.descriptor()
    open(path, 'w').write(out)


if __name__ == '__main__':
    PROF = '--prof' in sys.argv
    for arg in sys.argv[1:]:
        if '=' in arg:
            k_, v_ = arg.split('=')
            globals()[k_] = int(v_) if v_.lstrip('-').isdigit() else v_.replace('_', ' ')
    paths = [x for x in sys.argv[1:] if x.endswith('.s')]
    build(paths[0] if paths else 'cdna_kernels/' + NAME + '.s')
```
